```python
import torch

def _softmax(x, axis=-1):
    return torch.softmax(x, dim=axis)
def _gelu(x):
    return torch.nn.functional.gelu(x, approximate="tanh")
def _silu(x):
    return torch.nn.functional.silu(x)
def _sigmoid(x):
    return torch.sigmoid(x)
def _layernorm(x, axis=-1, eps=1e-5):
    m = x.mean(dim=axis, keepdim=True)
    v = x.var(dim=axis, keepdim=True, unbiased=False)
    return (x - m) / torch.sqrt(v + eps)
def _scatter_add(tgt, idx, src, axis=0):
    return tgt.clone().index_add_(axis, idx, src)
def _segment_sum(src, seg, n):
    out = torch.zeros((n,) + src.shape[1:], dtype=src.dtype)
    return out.index_add_(0, seg, src)
def _pad(x, pw):
    flat = tuple(v for pair in reversed(pw) for v in pair)
    return torch.nn.functional.pad(x, flat)

kernel_name = 'recurrent_scan__gqa_block_cached__swiglu_ffn__decode'

def setup_inputs():

    _w = (lambda a: (lambda t: t.to(torch.bfloat16) if t.is_floating_point() else t)(torch.as_tensor(a)))
    def _A_setup():
        B, Sq, D = 1, 1, 576
        Hq, Hkv, Sk, Dh = 32, 16, 8192, 128
        assert Hq % Hkv == 0, (Hq, Hkv)
        return {
            "x": _w((lambda *s: torch.randn(*s, dtype=torch.bfloat16) * 0.05)(B, Sq, D)),
            "k_cache": _w((lambda *s: torch.randn(*s, dtype=torch.bfloat16) * 1.6)(B, Hkv, Sk, Dh)),
            "v_cache": _w((lambda *s: torch.randn(*s, dtype=torch.bfloat16) * 0.2)(B, Hkv, Sk, Dh)),
            "wq": _w((lambda *s: torch.randn(*s, dtype=torch.bfloat16) * 1.6)(D, Hq * Dh) * (D ** -0.5)),
            "wo": _w((lambda *s: torch.randn(*s, dtype=torch.bfloat16) * 0.2)(Hq * Dh, D) * ((Hq * Dh) ** -0.5)),
        }
    _A_in = _A_setup()

    def _B_setup():
        B, S, D, F = 1, 1, 576, 4608
        return {
            "x": _w((lambda *s: torch.randn(*s, dtype=torch.bfloat16) * 0.05)(B, S, D)),
            "w_gate": _w((lambda *s: torch.randn(*s, dtype=torch.bfloat16) * 0.1)(D, F)),
            "w_up": _w((lambda *s: torch.randn(*s, dtype=torch.bfloat16) * 0.1)(D, F)),
            "w_down": _w((lambda *s: torch.randn(*s, dtype=torch.bfloat16) * 0.1)(F, D)),
        }
    _B_in = _B_setup()

    return {
        "A_x": _A_in["x"],
        "A_k_cache": _A_in["k_cache"],
        "A_v_cache": _A_in["v_cache"],
        "A_wq": _A_in["wq"],
        "A_wo": _A_in["wo"],
        "B_x": _B_in["x"],
        "B_w_gate": _B_in["w_gate"],
        "B_w_up": _B_in["w_up"],
        "B_w_down": _B_in["w_down"],
    }

def reference(A_x, A_k_cache, A_v_cache, A_wq, A_wo, B_x, B_w_gate, B_w_up, B_w_down):
    def _A_ref(x, k_cache, v_cache, wq, wo):
        B, Sq, D = x.shape
        Hq, Dh = 32, 128
        Hkv = k_cache.shape[1]
        rep = Hq // Hkv
        q = (lambda x, *d: x.permute(*d))((x @ wq).reshape(B, Sq, Hq, Dh), 0, 2, 1, 3)
        k = (lambda x, n, axis: torch.repeat_interleave(x, n, dim=axis))(k_cache, rep, axis=1)
        v = (lambda x, n, axis: torch.repeat_interleave(x, n, dim=axis))(v_cache, rep, axis=1)
        scores = torch.einsum("bhqd,bhkd->bhqk", q, k) * (Dh ** -0.5)
        p = _softmax(scores, axis=-1)
        o = torch.einsum("bhqk,bhkd->bhqd", p, v)
        return (lambda x, *d: x.permute(*d))(o, 0, 2, 1, 3).reshape(B, Sq, Hq * Dh) @ wo

    def _B_ref(x, w_gate, w_up, w_down):
        g = _silu(x @ w_gate)
        u = x @ w_up
        return (g * u) @ w_down

    x = A_x
    xn = _layernorm(x, axis=-1)
    s = _A_ref(xn, A_k_cache, A_v_cache, A_wq, A_wo)
    g = _silu(_B_ref(xn, B_w_gate, B_w_up, B_w_down))
    return x + s * g
```

```python
KN = "recurrent_scan__gqa_block_cached__swiglu_ffn__decode_kernel"
HDR = open("recurrent_scan__gqa_block_cached__swiglu_ffn__decode.s.ref").read().split("; Override launch")[0]

class Asm:
    def __init__(self):
        self.l = []
        self.uid = 0
    def __call__(self, s=""):
        for line in s.split("\n"):
            line = line.strip()
            if not line: continue
            if line.endswith(":") or line.startswith("."):
                self.l.append(line)
            else:
                self.l.append("    " + line)
    def label(self, p="L"):
        self.uid += 1
        return f"{p}_{self.uid}"
    def text(self):
        return "\n".join(self.l) + "\n"

def kernel_begin(a, name=KN):
    a(f".globl {name}")
    a(".p2align 8")
    a(f".type {name},@function")
    a(f"{name}:")

def descriptor(name, vgpr, sgpr=102, accum=None):
    if accum is None: accum = (vgpr + 3) // 4 * 4
    return f""".amdhsa_kernel {name}
  .amdhsa_next_free_vgpr {vgpr}
  .amdhsa_next_free_sgpr {sgpr}
  .amdhsa_accum_offset {accum}
  .amdhsa_group_segment_fixed_size 0
  .amdhsa_kernarg_size 96
  .amdhsa_user_sgpr_count 2
  .amdhsa_user_sgpr_kernarg_segment_ptr 1
  .amdhsa_system_sgpr_workgroup_id_x 1
  .amdhsa_float_denorm_mode_32 3
  .amdhsa_float_denorm_mode_16_64 3
.end_amdhsa_kernel
"""

def wrap(launch_lines, body, descs):
    s = HDR
    for l in launch_lines: s += l + "\n"
    s += '.amdgcn_target "amdgcn-amd-amdhsa--gfx950"\n.text\n'
    s += body
    s += '.section .rodata,"a"\n'
    for d in descs:
        s += ".p2align 6\n" + d
    return s

def srd(a, d, b, nbytes):
    a(f"s_mov_b32 s{d}, s{b}")
    a(f"s_and_b32 s{d+1}, s{b+1}, 0xffff")
    a(f"s_mov_b32 s{d+2}, {nbytes}")
    a(f"s_mov_b32 s{d+3}, 0x20000")
```

```python
import re
from g import *

TRANS = ("v_exp_f32", "v_log_f32", "v_rcp_f32", "v_rsq_f32", "v_sqrt_f32", "v_sin_f32", "v_cos_f32", "v_rcp_iflag_f32")

def regs_of(tok):
    tok = tok.strip()
    tok = tok.lstrip("-").strip("|")
    m = re.fullmatch(r"([vs])(\d+)", tok)
    if m: return [(m.group(1), int(m.group(2)))]
    m = re.fullmatch(r"([vs])\[(\d+):(\d+)\]", tok)
    if m: return [(m.group(1), i) for i in range(int(m.group(2)), int(m.group(3)) + 1)]
    if tok == "vcc": return [("s", 106), ("s", 107)]
    if tok == "vcc_lo": return [("s", 106)]
    if tok == "vcc_hi": return [("s", 107)]
    if tok == "exec": return [("s", 126), ("s", 127)]
    return []

def split_ops(rest):
    out, depth, cur = [], 0, ""
    for ch in rest:
        if ch == "[": depth += 1
        if ch == "]": depth -= 1
        if ch == "," and depth == 0:
            out.append(cur); cur = ""
        else: cur += ch
    out.append(cur)
    res = []
    for o in out:
        o = o.strip()
        res.append(o.split()[0] if o else o)
    return res

class St:
    def __init__(s):
        s.valu = {}
        s.trans = {}
        s.mfma = {}
        s.srcc = {}
        s.sgpr = {}
        s.stdata = {}
        s.sdwa = {}
    def copy(s, shift=0):
        n = St()
        for k in ("valu", "trans", "srcc", "sgpr", "stdata", "sdwa"):
            setattr(n, k, {r: t + shift for r, t in getattr(s, k).items()})
        n.mfma = {r: (t + shift, f, z) for r, (t, f, z) in s.mfma.items()}
        return n
    def merge(s, o):
        for k in ("valu", "trans", "srcc", "sgpr", "stdata", "sdwa"):
            d = getattr(s, k)
            for r, t in getattr(o, k).items():
                if r not in d or d[r] < t: d[r] = t
        for r, (t, f, z) in o.mfma.items():
            if r not in s.mfma or s.mfma[r][0] < t: s.mfma[r] = (t, -1, -1)

class HAsm(Asm):
    def __init__(self):
        super().__init__()
        self.t = 0
        self.st = St()
        self.snap = {}
        self.seen = set()
        self.dead = False
        self.q = []
        self.nops = 0
    def raw(self, line):
        self.l.append("    " + line)
    def nop(self, n):
        while n > 0:
            k = min(n, 16)
            self.raw(f"s_nop {k-1}"); self.t += k; n -= k; self.nops += 1
    def __call__(self, s=""):
        for line in s.split("\n"):
            line = line.split(";")[0].strip()
            if not line: continue
            if line.endswith(":"):
                self.do_label(line[:-1]); continue
            if line.startswith("."):
                self.l.append(line); continue
            self.ins(line)
    def do_label(self, name):
        self.l.append(name + ":")
        self.seen.add(name)
        snaps = self.snap.pop(name, [])
        if self.dead:
            self.st = St(); self.dead = False
        for (st, tt) in snaps:
            self.st.merge(st.copy(self.t - tt))
    def pending_all(self):
        st, t = self.st, self.t
        need = 0
        for d, lim in ((st.valu, 2), (st.trans, 2), (st.srcc, 3), (st.sgpr, 5), (st.stdata, 2), (st.sdwa, 1)):
            for r, tt in d.items(): need = max(need, lim - (t - tt - 1))
        for r, (tt, f, z) in st.mfma.items(): need = max(need, 8 - (t - tt - 1))
        return need
    def ins(self, line):
        parts = line.split(None, 1)
        op = parts[0]; rest = parts[1] if len(parts) > 1 else ""
        ops = split_ops(rest) if rest else []
        st = self.st
        R = lambda i: regs_of(ops[i]) if i < len(ops) else []
        allr = lambda a: [r for i in range(a, len(ops)) for r in R(i)]
        need = 0
        def req(d, r, lim):
            nonlocal need
            if r in d:
                tt = d[r][0] if isinstance(d[r], tuple) else d[r]
                need = max(need, lim - (self.t - tt - 1))
        if op == "s_nop":
            self.raw(line); self.t += int(ops[0]) + 1; return
        isv = op.startswith("v_")
        ismfma = op.startswith("v_mfma")
        isvmem = op.startswith(("buffer_", "global_"))
        isds = op.startswith("ds_")
        dst, src = [], []
        if ismfma:
            dst = R(0); a_b = R(1) + R(2); c = R(3)
            for r in a_b:
                req(st.valu, r, 2); req(st.mfma, r, 8)
            for r in c:
                req(st.valu, r, 2)
                if r in st.mfma:
                    tt, f, z = st.mfma[r]
                    if not (f == c[0][1] and z == len(c)): req(st.mfma, r, 6)
            for r in dst:
                if r in st.mfma and r not in c: req(st.mfma, r, 8)
        elif isv:
            isdpp = "_dpp" in op or "quad_perm" in rest or "row_" in rest
            isperm = op.startswith("v_permlane")
            isrl = op.startswith(("v_readlane", "v_readfirstlane"))
            dst = R(0); src = allr(1)
            if isperm: dst = R(0) + R(1); src = R(0) + R(1)
            if op.startswith(("v_fmac", "v_mac", "v_dot2c", "v_writelane")) or isdpp or "sdwa" in op: src = src + R(0)
            if op.startswith("v_cndmask") and len(ops) == 3: src = src + regs_of("vcc")
            if op.startswith(("v_add_co", "v_sub_co", "v_addc_co", "v_subb_co")):
                dst = R(0) + R(1); src = allr(2)
            for r in src:
                if r[0] == "v":
                    if isdpp and r in R(1): req(st.valu, r, 2)
                    if isperm: req(st.valu, r, 2)
                    if isrl: req(st.valu, r, 1)
                    if not op.startswith(TRANS): req(st.trans, r, 1)
                    req(st.mfma, r, 8); req(st.sdwa, r, 1)
                else:
                    req(st.sgpr, r, 4 if op.startswith(("v_readlane", "v_writelane")) else 2)
            for r in dst:
                if r[0] == "v":
                    req(st.mfma, r, 8); req(st.srcc, r, 3); req(st.stdata, r, 2)
        elif isvmem or isds:
            isload = ("load" in op) or op.startswith(("ds_read", "ds_bpermute", "ds_permute", "ds_swizzle"))
            if isload: dst = R(0); src = allr(1)
            else: src = allr(0)
            for r in src:
                if r[0] == "v": req(st.mfma, r, 8)
                elif isvmem: req(st.sgpr, r, 5)
            for r in dst:
                req(st.mfma, r, 8); req(st.stdata, r, 1)
        isbr = op.startswith(("s_cbranch", "s_branch"))
        if isbr and ops[0] in self.seen:
            need = max(need, self.pending_all() - 1)
        if op.startswith("s_cbranch_vcc"):
            for r in regs_of("vcc"): req(st.sgpr, r, 1)
        if need > 0: self.nop(need)
        self.raw(line)
        t = self.t
        if ismfma:
            for r in dst:
                st.mfma[r] = (t, dst[0][1], len(dst)); st.valu.pop(r, None)
            for r in R(3): st.srcc[r] = t
        elif isv:
            for r in dst:
                if r[0] == "v":
                    st.valu[r] = t; st.mfma.pop(r, None)
                    if op.startswith(TRANS): st.trans[r] = t
                    else: st.trans.pop(r, None)
                    if "sdwa" in op or "op_sel" in rest: st.sdwa[r] = t
                else: st.sgpr[r] = t
        elif isvmem and ("store" in op) and ("x4" in op or "x3" in op):
            d = R(0) if op.startswith("buffer_") else R(1)
            for r in d: st.stdata[r] = t
        elif op.startswith("s_") and not isbr and ops:
            for r in R(0): st.sgpr.pop(r, None)
        self.t += 1
        if isbr:
            if ops[0] not in self.seen:
                self.snap.setdefault(ops[0], []).append((st.copy(), self.t))
            if op == "s_branch": self.dead = True
        if op == "s_endpgm": self.dead = True
    def vm(self, name, line):
        self(line); self.q.append(name)
    def wait(self, name, lgkm=False):
        idx = max(i for i, n in enumerate(self.q) if n == name)
        n = len(self.q) - 1 - idx
        assert n <= 63
        self(f"s_waitcnt vmcnt({n})" + (" lgkmcnt(0)" if lgkm else ""))
        self.q = self.q[idx + 1:]
    def waitall(self):
        self("s_waitcnt vmcnt(0)"); self.q = []
```

```python
import sys
from hz import *
QP, GU, ML, OP, SD, STAMP = 0x10000, 0x40000, 0xE0000, 0x100000, 0x200000, 0x800000
WSREC = 0x1000000
XN, QL, MLW, HL, OL = 0, 2560, 3072, 3328, 4096
OLS = 1040
LDS = OL + 16 * OLS
LOG2E = 0x3fb8aa3b
SCALE = 0x3db504f3
FULL = "row_mask:0xf bank_mask:0xf"
assert all((t * 911) >> 16 == t // 72 for t in range(1152))

def gen(out="k1.s", W=4, stamps=False, pol="nt", spin=200000, slp=1):
    a = HAsm()
    kernel_begin(a)
    K0, V0, P1, P2 = 20, 52, 88, 52
    vL16, vK, vM, vW, vE = 1, 2, 4, 3, 8
    sT, sH, sJ, sKV = 60, 61, 62, 63
    def stamp(i):
        if stamps: a(f"s_memrealtime s[{74+2*i}:{75+2*i}]")
    def r4(b): return f"v[{b}:{b+3}]"
    def allred(op, x, t, rows=True, inrow=True):
        if inrow:
            for m in ("quad_perm:[1,0,3,2]", "quad_perm:[2,3,0,1]", "row_half_mirror", "row_mirror"):
                a(f"{op}_dpp v{x}, v{x}, v{x} {m} {FULL}")
        if rows:
            for sw in ("v_permlane16_swap_b32", "v_permlane32_swap_b32"):
                a(f"v_mov_b32 v{t}, v{x}")
                a(f"{sw} v{t}, v{x}")
                a(f"{op} v{x}, v{x}, v{t}")
    def red8(op, xs):
        for m in ("quad_perm:[1,0,3,2]", "quad_perm:[2,3,0,1]", "row_half_mirror"):
            for x in xs: a(f"{op}_dpp v{x}, v{x}, v{x} {m} {FULL}")
    def tagcheck(tags, tmp, retry):
        accs = []
        for i in range(0, len(tags), 2):
            a(f"v_bitop3_b32 v{tmp[i//2]}, v{tags[i]}, v{tags[i+1]}, s{sT} bitop3:0x7e")
            accs.append(tmp[i // 2])
        while len(accs) > 1:
            n = []
            i = 0
            while i < len(accs):
                if i + 2 < len(accs):
                    a(f"v_or3_b32 v{accs[i]}, v{accs[i]}, v{accs[i+1]}, v{accs[i+2]}"); n.append(accs[i]); i += 3
                elif i + 1 < len(accs):
                    a(f"v_or_b32 v{accs[i]}, v{accs[i]}, v{accs[i+1]}"); n.append(accs[i]); i += 2
                else:
                    n.append(accs[i]); i += 1
            accs = n
        a(f"v_cmp_ne_u32 vcc, 0, v{accs[0]}")
        a(f"s_cbranch_vccnz {retry}")
    def poll(issue, tags, tmp, first_issued=False):
        top, chk, retry, done = a.label("PT"), a.label("PC"), a.label("PR"), a.label("PD")
        a(f"s_mov_b32 s70, {spin}")
        if first_issued: a(f"s_branch {chk}")
        a(f"{top}:")
        issue()
        a("s_waitcnt vmcnt(0)")
        a.q = []
        a(f"{chk}:")
        a("s_sub_u32 s70, s70, 1")
        a(f"s_cbranch_scc1 {done}")
        tagcheck(tags, tmp, retry)
        a(f"s_branch {done}")
        a(f"{retry}:")
        if slp: a(f"s_sleep {slp}")
        a(f"s_branch {top}")
        a(f"{done}:")
    def mk_a(dst, xx):
        for r in range(4): a(f"v_and_b32 v{dst+r}, v{xx}, v{vM+r}")
    def epilogue(D, o, voff, soff, name):
        a(f"v_permlane32_swap_b32 v{D}, v{D+2}")
        a(f"v_permlane32_swap_b32 v{D+1}, v{D+3}")
        a(f"v_mov_b32 v{o+1}, s{sT}")
        a(f"v_mov_b32 v{o+3}, s{sT}")
        a(f"v_add_f32_dpp v{o}, v{D+2}, v{D} row_ror:8 {FULL}")
        a(f"v_add_f32_dpp v{o+2}, v{D+3}, v{D+1} row_ror:8 {FULL}")
        a("s_mov_b32 exec_lo, 0x00ff00ff")
        a("s_mov_b32 exec_hi, 0x00ff00ff")
        a.vm(name, f"buffer_store_dwordx4 {r4(o)}, v{voff}, s[36:39], {soff} offen sc1")
        a("s_mov_b64 exec, -1")
    def kload(t):
        a.vm(f"K{t}", f"buffer_load_dwordx4 {r4(K0+4*t)}, v{vK}, s[28:31], s{sKV if t < 4 else 64} offen offset:{(t%4)*1024} {pol}")
    def vload(t):
        a.vm(f"V{t}", f"buffer_load_dwordx4 {r4(V0+4*t)}, v{vL16}, s[32:35], s{sKV if t < 4 else 64} offen offset:{(t%4)*1024} {pol}")
    def rnd(x, t=None):
        a(f"v_cvt_pk_bf16_f32 v{x}, v{x}, v{x}")
        a(f"v_and_b32 v{x}, 0xffff0000, v{x}")
    def silu(x, t):
        a(f"v_mul_f32 v{t}, 0xbfb8aa3b, v{x}")
        a(f"v_exp_f32 v{t}, v{t}")
        a(f"v_add_f32 v{t}, 1.0, v{t}")
        a(f"v_rcp_f32 v{t}, v{t}")
        a(f"v_mul_f32 v{x}, v{x}, v{t}")

    a("s_cmp_ge_u32 s2, 256")
    a("s_cbranch_scc1 L_end")
    a("s_load_dwordx16 s[4:19], s[0:1], 0")
    a("s_load_dwordx8 s[20:27], s[0:1], 64")
    if stamps:
        for i in range(76, 102): a(f"s_mov_b32 s{i}, 0")
    stamp(0)
    a("v_lshrrev_b32 v9, 6, v0")
    a("v_and_b32 v0, 63, v0")
    a("v_readfirstlane_b32 s3, v9")
    a(f"v_lshlrev_b32 v{vL16}, 4, v0")
    a("v_lshrrev_b32 v10, 4, v0")
    a("v_bfe_u32 v11, v0, 2, 2")
    a("v_and_b32 v12, 3, v0")
    a(f"v_lshlrev_b32 v{vK}, 8, v11")
    a(f"v_lshl_add_u32 v{vK}, v10, 6, v{vK}")
    a(f"v_lshl_add_u32 v{vK}, v12, 4, v{vK}")
    a(f"s_and_b32 s{sH}, s2, 15")
    a(f"s_lshr_b32 s{sJ}, s2, 4")
    a(f"s_lshl_b32 s{sKV}, s{sH}, 21")
    a(f"s_lshl_b32 s64, s{sJ}, 17")
    a(f"s_add_u32 s{sKV}, s{sKV}, s64")
    a("s_lshl_b32 s64, s3, 13")
    a(f"s_add_u32 s{sKV}, s{sKV}, s64")
    a(f"s_add_u32 s64, s{sKV}, 4096")
    a("s_mov_b32 s30, 33554432"); a("s_mov_b32 s31, 0x20000")
    a("s_mov_b32 s34, 33554432"); a("s_mov_b32 s35, 0x20000")
    a(f"s_mov_b32 s38, {WSREC}"); a("s_mov_b32 s39, 0x20000")
    a("v_and_b32 v13, 7, v0")
    a("v_lshrrev_b32 v14, 3, v0")
    a("v_and_b32 v15, 1, v0")
    a("v_lshlrev_b32 v15, 4, v15")
    a("v_lshlrev_b32 v15, v15, 0xffff" if False else "v_mov_b32 v16, 0xffff")
    a("v_lshlrev_b32 v15, v15, v16")
    a("v_lshrrev_b32 v16, 1, v13")
    for r in range(4):
        a(f"v_cmp_eq_u32 vcc, {r}, v16")
        a(f"v_cndmask_b32 v{vM+r}, 0, v15, vcc")
    a("s_waitcnt lgkmcnt(0)")
    a("s_load_dword s60, s[26:27], 0")
    a("s_mov_b32 s28, s6"); a("s_and_b32 s29, s7, 0xffff")
    a("s_mov_b32 s32, s8"); a("s_and_b32 s33, s9, 0xffff")
    a("s_mov_b32 s36, s26"); a("s_and_b32 s37, s27, 0xffff")
    a("s_bfe_u32 s65, s2, 0x10003")
    a("s_add_u32 s66, s65, 5")
    a("s_cmp_ge_u32 s3, s66")
    a("s_cbranch_scc1 L_RK")
    srd(a, 44, 4, 1152)
    a("v_lshlrev_b32 v17, 1, v0")
    X = K0
    for i in range(9): a(f"v_mov_b32 v{X+i}, 0")
    for i in range(9):
        a.vm("X", f"buffer_load_short_d16_hi v{X+i}, v17, s[44:47], 0 offen offset:{i*128}")
    a("s_mov_b32 s43, 0x20000")
    a("s_cmp_eq_u32 s3, 0")
    a("s_cbranch_scc1 L_wq")
    a("s_and_b32 s67, s2, 7")
    a(f"s_lshl3_add_u32 s67, s{sJ}, s67")
    a("s_mul_i32 s67, s67, 9")
    a("s_lshl2_add_u32 s67, s65, s67")
    a("s_add_u32 s67, s67, s3")
    a("s_sub_u32 s67, s67, 1")
    a("s_mul_i32 s68, s67, 911")
    a("s_lshr_b32 s68, s68, 16")
    a("s_mul_i32 s69, s68, 72")
    a("s_sub_u32 s67, s67, s69")
    a("s_cmp_ge_u32 s68, 8")
    a("s_cselect_b32 s40, s18, s16")
    a("s_cselect_b32 s41, s19, s17")
    a("s_and_b32 s41, s41, 0xffff")
    a("s_mov_b32 s42, 5308416")
    a(f"s_mul_i32 s71, s68, {4608*8}")
    a("s_lshl_b32 s69, s67, 9")
    a("s_add_u32 s71, s71, s69")
    a(f"s_add_u32 s71, s71, {GU}")
    a("s_and_b32 s68, s68, 7")
    a("s_mul_i32 s72, s68, 288")
    a(f"s_mul_i32 s68, s68, {72*9216}")
    a("s_lshl_b32 s67, s67, 7")
    a("s_add_u32 s68, s68, s67")
    a("s_movk_i32 s69, 9216")
    a("s_branch L_p1")
    a("L_wq:")
    a("s_mov_b32 s40, s10"); a("s_and_b32 s41, s11, 0xffff"); a("s_mov_b32 s42, 4718592")
    a(f"s_and_b32 s67, s{sJ}, 3")
    a(f"s_lshr_b32 s68, s{sJ}, 2")
    a(f"s_lshl2_add_u32 s71, s{sH}, s68")
    a("s_lshl2_add_u32 s71, s71, s67")
    a("s_lshl_b32 s71, s71, 9")
    a(f"s_add_u32 s71, s71, {QP}")
    a("s_mul_i32 s72, s68, 576")
    a(f"s_lshl2_add_u32 s67, s{sH}, s67")
    a(f"s_mul_i32 s68, s68, {144*8192}")
    a("s_lshl_b32 s67, s67, 7")
    a("s_add_u32 s68, s68, s67")
    a("s_movk_i32 s69, 8192")
    a("L_p1:")
    a(f"v_mul_u32_u24 v{vW}, s69, v14")
    a(f"v_lshl_add_u32 v{vW}, v13, 4, v{vW}")
    a("s_lshl_b32 s69, s69, 3")
    for t in range(9):
        a.vm(f"A{t}", f"buffer_load_dwordx4 {r4(P1+4*t)}, v{vW}, s[40:43], s68 offen {pol}")
        a("s_add_u32 s68, s68, s69")
    a("s_cmp_lg_u32 s3, 0")
    a("s_cbranch_scc1 L_ln1")
    for t in range(9):
        a(f"buffer_load_dwordx4 {r4(P2+4*t)}, v{vW}, s[40:43], s68 offen {pol}")
        a("s_add_u32 s68, s68, s69")
    a("s_waitcnt vmcnt(18)")
    a("s_branch L_ln")
    a("L_ln1:")
    a("s_waitcnt vmcnt(9)")
    a("L_ln:")
    stamp(1)
    S, Tm = X + 10, X + 11
    a(f"v_add_f32 v{S}, v{X}, v{X+1}")
    for i in range(2, 9): a(f"v_add_f32 v{S}, v{S}, v{X+i}")
    allred("v_add_f32", S, Tm)
    a(f"v_mul_f32 v{S}, 0x3ae38e39, v{S}")
    Q2 = X + 12
    a(f"v_sub_f32 v{Tm}, v{X}, v{S}")
    a(f"v_mul_f32 v{Q2}, v{Tm}, v{Tm}")
    for i in range(1, 9):
        a(f"v_sub_f32 v{Tm}, v{X+i}, v{S}")
        a(f"v_fmac_f32 v{Q2}, v{Tm}, v{Tm}")
    allred("v_add_f32", Q2, Tm)
    a(f"v_mul_f32 v{Q2}, 0x3ae38e39, v{Q2}")
    rnd(S); rnd(Q2)
    a(f"v_add_f32 v{Q2}, 0x3727c5ac, v{Q2}")
    rnd(Q2)
    a(f"v_sqrt_f32 v{Q2}, v{Q2}")
    rnd(Q2)
    a(f"v_rcp_f32 v{Q2}, v{Q2}")
    a("v_lshlrev_b32 v17, 2, v0")
    for i in range(9):
        a(f"v_sub_f32 v{X+i}, v{X+i}, v{S}")
    for i in range(9): rnd(X + i)
    for i in range(9):
        a(f"v_mul_f32 v{X+i}, v{X+i}, v{Q2}")
        a(f"v_cvt_pk_bf16_f32 v{X+i}, v{X+i}, v{X+i}")
        a(f"ds_write_b32 v17, v{X+i} offset:{XN + i*256}")
    a(f"v_lshlrev_b32 v{vE}, 6, v13")
    a("v_and_b32 v17, 1, v10")
    a(f"v_lshl_add_u32 v{vE}, v17, 5, v{vE}")
    a("v_lshrrev_b32 v17, 1, v10")
    a(f"v_lshl_add_u32 v{vE}, v17, 4, v{vE}")
    a("v_lshl_add_u32 v17, v14, 2, s72")
    a("s_waitcnt lgkmcnt(0)")
    a(f"s_mul_i32 s{sT}, s{sT}, 0x9E3779B1")
    a(f"s_add_u32 s{sT}, s{sT}, 0x7F4A7C15")
    XX, AT, DD = X, X + 20, X + 28
    for t in range(0, 18, 2):
        a(f"ds_read2_b32 v[{XX+t}:{XX+t+1}], v17 offset0:{8*t} offset1:{8*t+8}")
    a("s_waitcnt lgkmcnt(0)")
    a("s_cmp_lg_u32 s3, 0")
    a("s_cbranch_scc1 L_g1")
    for t in range(18):
        mk_a(AT + 4 * (t & 1), XX + t)
        a(f"s_waitcnt vmcnt({17-t})")
        B = P1 + 4 * t if t < 9 else P2 + 4 * (t - 9)
        a(f"v_mfma_f32_16x16x32_bf16 {r4(DD)}, {r4(AT+4*(t&1))}, {r4(B)}, {r4(DD) if t else 0}")
    a.q = []
    epilogue(DD, AT, vE, "s71", "pub")
    stamp(2)
    for t in range(8): kload(t)
    a(f"s_lshl_b32 s67, s{sH}, 13")
    a(f"s_add_u32 s67, s67, {QP}")
    a("s_add_u32 s68, s67, 4096")
    def qissue():
        for n in range(8):
            a(f"buffer_load_dwordx4 {r4(P1+4*n)}, v{vL16}, s[36:39], s{67 + n//4} offen offset:{(n%4)*1024} sc1")
    poll(qissue, [P1 + 2 * i + 1 for i in range(16)], list(range(V0, V0 + 8)))
    stamp(3)
    for t in range(8): vload(t)
    for i in range(2):
        b = P1 + 4 * i
        for e in (0, 2):
            a(f"v_add_f32 v{b+e}, v{b+e}, v{b+8+e}")
            a(f"v_add_f32 v{b+16+e}, v{b+16+e}, v{b+24+e}")
            a(f"v_add_f32 v{b+e}, v{b+e}, v{b+16+e}")
        a(f"v_cvt_pk_bf16_f32 v{b}, v{b}, v{b+2}")
    a("v_lshlrev_b32 v17, 2, v0")
    a(f"ds_write_b32 v17, v{P1} offset:{QL}")
    a(f"ds_write_b32 v17, v{P1+4} offset:{QL+256}")
    a("s_branch L_b1")
    a("L_g1:")
    for t in range(9):
        mk_a(AT + 4 * (t & 1), XX + t)
        a(f"s_waitcnt vmcnt({8-t})")
        a(f"v_mfma_f32_16x16x32_bf16 {r4(DD)}, {r4(AT+4*(t&1))}, {r4(P1+4*t)}, {r4(DD) if t else 0}")
    a.q = []
    epilogue(DD, AT, vE, "s71", "pub")
    stamp(2)
    for t in range(8): kload(t)
    for t in range(8): vload(t)
    a("s_branch L_b1")
    a("L_RK:")
    a.q = []
    seq = [("K", t) for t in range(8)] + [("V", t) for t in range(8)]
    tagdone = False
    for n, (kind, t) in enumerate(seq):
        if W and n >= W and n - W <= 7:
            a.wait(f"K{n-W}")
        if n == 8:
            pass
        (kload if kind == "K" else vload)(t)
    a("s_waitcnt lgkmcnt(0)")
    a(f"s_mul_i32 s{sT}, s{sT}, 0x9E3779B1")
    a(f"s_add_u32 s{sT}, s{sT}, 0x7F4A7C15")
    a("L_b1:")
    a.q = [f"K{t}" for t in range(8)] + [f"V{t}" for t in range(8)]
    QB = 84
    a("v_bfe_u32 v17, v0, 3, 1")
    a("v_lshlrev_b32 v17, 8, v17")
    a("v_lshl_add_u32 v17, v10, 6, v17")
    a("v_lshl_add_u32 v17, v12, 4, v17")
    a("s_waitcnt lgkmcnt(0)")
    stamp(4)
    a("s_barrier")
    a(f"ds_read_b128 {r4(QB)}, v17 offset:{QL}")
    a("v_mov_b32 v9, 0xffff0000")
    a.wait("K7", lgkm=True)
    stamp(5)
    Dt = lambda t: 124 if t == 0 else K0 + 4 * (t - 1)
    for t in range(8):
        a(f"v_mfma_f32_16x16x32_bf16 {r4(Dt(t))}, {r4(K0+4*t)}, {r4(QB)}, 0")
    SC = 108
    for t in range(8):
        d = Dt(t)
        a(f"v_add_f32_dpp v{d}, v{d+1}, v{d} quad_perm:[1,1,1,1] {FULL}")
        a(f"v_add_f32_dpp v{d+2}, v{d+3}, v{d+2} quad_perm:[3,3,3,3] {FULL}")
    for t in range(8):
        d = Dt(t)
        a(f"v_add_f32_dpp v{d}, v{d+2}, v{d} quad_perm:[2,2,2,2] {FULL}")
    for t in range(8):
        d = Dt(t)
        a(f"v_cvt_pk_bf16_f32 v{d}, v{d}, v{d}")
    for t in range(8):
        d = Dt(t)
        a(f"v_and_b32_dpp v{SC+t}, v{d}, v9 quad_perm:[0,0,0,0] {FULL}")
    for t in range(8): a(f"v_mul_f32 v{SC+t}, {SCALE:#x}, v{SC+t}")
    for t in range(8): a(f"v_cvt_pk_bf16_f32 v{SC+t}, v{SC+t}, v{SC+t}")
    for t in range(8): a(f"v_and_b32 v{SC+t}, v9, v{SC+t}")
    Mx, Ls, T1 = 116, 117, 118
    a(f"v_max3_f32 v{Mx}, v{SC}, v{SC+1}, v{SC+2}")
    a(f"v_max3_f32 v{T1}, v{SC+3}, v{SC+4}, v{SC+5}")
    a(f"v_max3_f32 v{Mx}, v{Mx}, v{SC+6}, v{SC+7}")
    a(f"v_max_f32 v{Mx}, v{Mx}, v{T1}")
    allred("v_max_f32", Mx, T1, inrow=False)
    a(f"s_mov_b32 s65, {LOG2E:#x}")
    a(f"v_mul_f32 v{T1}, s65, v{Mx}")
    for t in range(8): a(f"v_fma_f32 v{SC+t}, v{SC+t}, s65, -v{T1}")
    for t in range(8): a(f"v_exp_f32 v{SC+t}, v{SC+t}")
    a(f"v_add_f32 v{Ls}, v{SC}, v{SC+1}")
    for t in range(2, 8): a(f"v_add_f32 v{Ls}, v{Ls}, v{SC+t}")
    allred("v_add_f32", Ls, T1, inrow=False)
    a("v_bfe_u32 v17, v0, 3, 1")
    a("v_lshlrev_b32 v17, 7, v17")
    a("s_lshl_b32 s66, s3, 3")
    a("v_add_u32 v18, s66, v17")
    a("s_mov_b64 exec, 0x101")
    a(f"ds_write_b64 v18, v[{Mx}:{Ls}] offset:{MLW}")
    a("s_mov_b64 exec, -1")
    a("v_lshl_add_u32 v17, v13, 4, v17")
    a("s_waitcnt lgkmcnt(0)")
    stamp(6)
    a("s_barrier")
    ML4 = 120
    a(f"ds_read_b128 {r4(ML4)}, v17 offset:{MLW}")
    a("s_cmp_lt_u32 s3, 7")
    a("s_cbranch_scc1 L_lo")
    WD0, WO0, MLP, OPL = 88, 100, 84, 0
    a("s_sub_u32 s66, s3, 7")
    a("s_mov_b32 s52, s20"); a("s_and_b32 s53, s21, 0xffff"); a("s_mov_b32 s55, 0x20000")
    a(f"s_mul_i32 s67, s2, {18*1152}")
    a(f"s_add_u32 s54, s67, {18*1152}")
    a("s_lshl_b32 s68, s66, 7")
    a("s_add_u32 s67, s67, s68")
    a(f"v_mul_u32_u24 v{vW}, 1152, v14")
    a(f"v_lshl_add_u32 v{vW}, v13, 4, v{vW}")
    for t in range(3):
        a.vm(f"WD{t}", f"buffer_load_dwordx4 {r4(WD0+4*t)}, v{vW}, s[52:55], s67 offen {pol}")
        if t < 2: a(f"s_add_u32 s67, s67, {8*1152}")
    srd(a, 48, 12, 4718592)
    a(f"s_lshl4_add_u32 s67, s{sH}, s{sJ}")
    a(f"s_mul_i32 s67, s67, {16*1152}")
    a("s_add_u32 s67, s67, s68")
    for t in range(2):
        a.vm(f"WO{t}", f"buffer_load_dwordx4 {r4(WO0+4*t)}, v{vW}, s[48:51], s67 offen {pol}")
        if t < 1: a(f"s_add_u32 s67, s67, {8*1152}")
    qhi = list(a.q)
    def pv_pre(publish):
        a("s_waitcnt lgkmcnt(0)")
        G = 119
        a(f"v_max_f32 v{G}, v{ML4}, v{ML4+2}")
        red8("v_max_f32", [G])
        a(f"v_sub_f32 v{T1}, v{Mx}, v{G}")
        a(f"v_mul_f32 v{T1}, s65, v{T1}")
        a(f"v_exp_f32 v{T1}, v{T1}")
        if publish:
            lab = a.label("NP")
            a("s_cmp_lg_u32 s3, 1")
            a(f"s_cbranch_scc1 {lab}")
            for e in (0, 2):
                a(f"v_sub_f32 v{ML4+e}, v{ML4+e}, v{G}")
                a(f"v_mul_f32 v{ML4+e}, s65, v{ML4+e}")
                a(f"v_exp_f32 v{ML4+e}, v{ML4+e}")
            a(f"v_mul_f32 v{ML4+1}, v{ML4}, v{ML4+1}")
            a(f"v_fmac_f32 v{ML4+1}, v{ML4+2}, v{ML4+3}")
            red8("v_add_f32", [ML4 + 1])
            a(f"v_mov_b32 v{ML4+2}, v{ML4+1}")
            a(f"v_mov_b32 v{ML4}, v{G}")
            a(f"v_mov_b32 v{ML4+1}, s{sT}")
            a(f"v_mov_b32 v{ML4+3}, s{sT}")
            a("v_bfe_u32 v17, v0, 3, 1")
            a("v_lshlrev_b32 v17, 8, v17")
            a(f"s_lshl_b32 s67, s{sH}, 9")
            a(f"s_lshl4_add_u32 s67, s{sJ}, s67")
            a(f"s_add_u32 s67, s67, {ML}")
            a("s_mov_b64 exec, 0x101")
            a(f"buffer_store_dwordx4 {r4(ML4)}, v17, s[36:39], s67 offen sc1")
            a("s_mov_b64 exec, -1")
            a(f"{lab}:")
        for t in range(8): a(f"v_mul_f32 v{SC+t}, v{SC+t}, v{T1}")
        for t in range(8): a(f"v_cvt_pk_bf16_f32 v{SC+t}, v{SC+t}, v{SC+t}")
        for t in range(8): mk_a(K0 + 4 * t, SC + t)
    OA = 124
    def pv(extra):
        for t in range(8):
            a(f"s_waitcnt vmcnt({7 - t + extra})")
            a(f"v_mfma_f32_16x16x32_bf16 {r4(OA)}, {r4(K0+4*t)}, {r4(V0+4*t)}, {r4(OA) if t else 0}")
    pv_pre(False)
    MP = 108
    a(f"s_lshr_b32 s67, s{sJ}, 3")
    a(f"s_lshl1_add_u32 s67, s{sH}, s67")
    a("s_lshl_b32 s67, s67, 8")
    a(f"s_add_u32 s72, s67, {ML}")
    a("v_lshlrev_b32 v18, 5, v13")
    def mlissue():
        for i in range(2):
            a(f"buffer_load_dwordx4 {r4(MP+4*i)}, v18, s[36:39], s72 offen offset:{16*i} sc1")
    mlissue()
    pv(7)
    a("s_branch L_o")
    a("L_lo:")
    pv_pre(True)
    a("s_cmp_lg_u32 s3, 6")
    a("s_cbranch_scc1 L_lo2")
    HP = 88
    a("s_mul_i32 s67, s2, 18")
    for t in range(3):
        a(f"v_add_u32 v{104+t}, s67, v14")
        if t: a(f"v_add_u32 v{104+t}, {8*t}, v{104+t}")
        a(f"v_min_u32 v{104+t}, 4607, v{104+t}")
        a(f"v_mov_b32 v107, 4608")
        a(f"v_mad_u32_u24 v{104+t}, v13, v107, v{104+t}")
        a(f"v_lshlrev_b32 v{104+t}, 3, v{104+t}")
    a(f"s_mov_b32 s67, {GU}")
    a(f"s_mov_b32 s68, {GU + 8*4608*8}")
    def hissue():
        for t in range(3):
            for m in range(2):
                a(f"buffer_load_dwordx2 v[{HP+4*t+2*m}:{HP+4*t+2*m+1}], v{104+t}, s[36:39], s{67+m} offen sc1")
    poll(hissue, [HP + 2 * i + 1 for i in range(6)], [100, 101, 102])
    red8("v_add_f32", [HP + 2 * i for i in range(6)])
    for i in range(6): rnd(HP + 2 * i)
    for t in range(3):
        silu(HP + 4 * t, HP + 4 * t + 1)
        rnd(HP + 4 * t)
        a(f"v_mul_f32 v{HP+4*t}, v{HP+4*t}, v{HP+4*t+2}")
        a(f"v_cvt_pk_bf16_f32 v{HP+4*t}, v{HP+4*t}, v{HP+4*t}")
    a("v_lshlrev_b32 v17, 2, v14")
    for t in range(3):
        a(f"ds_write_b32 v17, v{HP+4*t} offset:{HL + 32*t}")
    a("L_lo2:")
    pv(0)
    a("L_o:")
    stamp(7)
    a("v_lshrrev_b32 v17, 1, v10")
    a("v_lshlrev_b32 v17, 9, v17")
    a("v_and_b32 v19, 15, v0")
    a("v_lshl_add_u32 v17, v19, 5, v17")
    a("v_and_b32 v19, 1, v10")
    a("v_lshl_add_u32 v17, v19, 4, v17")
    a(f"s_mul_i32 s67, s3, {OLS}")
    a("v_add_u32 v17, s67, v17")
    a(f"ds_write_b128 v17, {r4(OA)} offset:{OL}")
    a(f"v_mul_u32_u24 v17, {4*OLS}, v12")
    a("v_and_b32 v19, 60, v0")
    a("v_add_u32 v17, v17, v19")
    a("s_lshl_b32 s67, s3, 6")
    a(f"s_add_u32 s67, s67, {OL}")
    a("v_add_u32 v17, s67, v17")
    a("v_bfe_u32 v19, v0, 2, 3")
    a("v_lshlrev_b32 v19, 4, v19")
    a("v_lshrrev_b32 v16, 5, v0")
    a("v_lshl_add_u32 v19, v16, 3, v19")
    a(f"s_lshl4_add_u32 s67, s{sH}, s3")
    a(f"s_lshl4_add_u32 s67, s67, s{sJ}")
    a("s_lshl_b32 s67, s67, 7")
    a(f"s_add_u32 s67, s67, {OP}")
    a(f"v_mov_b32 v{K0+5}, s{sT}")
    a("s_waitcnt lgkmcnt(0)")
    a("s_barrier")
    for i in range(4):
        a(f"ds_read_b32 v{K0+i}, v17 offset:{i*OLS}")
    a("s_waitcnt lgkmcnt(0)")
    a(f"v_add_f32 v{K0}, v{K0}, v{K0+1}")
    a(f"v_add_f32 v{K0+2}, v{K0+2}, v{K0+3}")
    a(f"v_add_f32 v{K0}, v{K0}, v{K0+2}")
    a(f"v_add_f32_dpp v{K0}, v{K0}, v{K0} quad_perm:[1,0,3,2] {FULL}")
    a(f"v_add_f32_dpp v{K0+4}, v{K0}, v{K0} quad_perm:[2,3,0,1] {FULL}")
    a("s_mov_b32 exec_lo, 0x11111111")
    a("s_mov_b32 exec_hi, 0x11111111")
    a(f"buffer_store_dwordx2 v[{K0+4}:{K0+5}], v19, s[36:39], s67 offen sc1")
    a("s_mov_b64 exec, -1")
    stamp(8)
    a("s_cmp_lt_u32 s3, 7")
    a("s_cbranch_scc1 L_fin")
    OQ = 116
    a(f"s_lshl4_add_u32 s67, s{sH}, s{sJ}")
    a("s_lshl_b32 s67, s67, 11")
    a(f"s_add_u32 s71, s67, {OP}")
    a("v_lshlrev_b32 v19, 8, v13")
    a("v_lshl_add_u32 v19, v14, 4, v19")
    def oissue():
        for i in range(2):
            a(f"buffer_load_dwordx4 {r4(OQ+4*i)}, v19, s[36:39], s71 offen offset:{128*i} sc1")
    oissue()
    a("v_lshlrev_b32 v17, 2, v14")
    a(f"ds_read2_b32 v[{K0+8}:{K0+9}], v17 offset0:{HL//4 % 256 if False else 0} offset1:8" if False else f"v_add_u32 v17, {HL}, v17")
    a(f"ds_read2_b32 v[{K0+8}:{K0+9}], v17 offset0:0 offset1:8")
    a(f"ds_read_b32 v{K0+10}, v17 offset:64")
    a("v_and_b32 v16, 1, v10")
    a(f"v_lshl_add_u32 v{vE}, v13, 1, v16")
    a(f"v_lshlrev_b32 v{vE}, 13, v{vE}")
    a("v_lshrrev_b32 v16, 1, v10")
    a(f"v_lshl_add_u32 v{vE}, v16, 4, v{vE}")
    a("s_lshl_b32 s67, s66, 17")
    a("s_lshl_b32 s68, s2, 5")
    a("s_add_u32 s67, s67, s68")
    a(f"s_add_u32 s67, s67, {SD}")
    a(f"s_add_u32 s68, s67, {144*8192}")
    a("s_waitcnt lgkmcnt(0)")
    for t in range(3): mk_a(K0 + 12 + 4 * t, K0 + 8 + t)
    a("s_waitcnt vmcnt(7)")
    for t in range(3):
        a(f"v_mfma_f32_16x16x32_bf16 {r4(OA)}, {r4(K0+12+4*t)}, {r4(WD0+4*t)}, {r4(OA) if t else 0}")
    epilogue(OA, K0 + 24, vE, "s68", "dpub")
    stamp(9)
    a("s_waitcnt vmcnt(4)")
    poll(mlissue, [MP + 1, MP + 3, MP + 5, MP + 7], [K0, K0 + 1], first_issued=True)
    G = K0
    a(f"v_max_f32 v{G}, v{MP}, v{MP+4}")
    red8("v_max_f32", [G])
    for e in (0, 4):
        a(f"v_sub_f32 v{MP+e}, v{MP+e}, v{G}")
        a(f"v_mul_f32 v{MP+e}, s65, v{MP+e}")
        a(f"v_exp_f32 v{MP+e}, v{MP+e}")
    a(f"v_mul_f32 v{MP+2}, v{MP}, v{MP+2}")
    a(f"v_fmac_f32 v{MP+2}, v{MP+4}, v{MP+6}")
    red8("v_add_f32", [MP + 2])
    a(f"v_rcp_f32 v{MP+2}, v{MP+2}")
    a(f"v_mul_f32 v{MP}, v{MP}, v{MP+2}")
    a(f"v_mul_f32 v{MP+4}, v{MP+4}, v{MP+2}")
    a("s_waitcnt vmcnt(1)")
    poll(oissue, [OQ + 1, OQ + 3, OQ + 5, OQ + 7], [K0, K0 + 1], first_issued=True)
    stamp(10)
    a(f"v_mul_f32 v{OQ}, v{OQ}, v{MP}")
    a(f"v_mul_f32 v{OQ+2}, v{OQ+2}, v{MP}")
    a(f"v_fmac_f32 v{OQ}, v{OQ+4}, v{MP+4}")
    a(f"v_fmac_f32 v{OQ+2}, v{OQ+6}, v{MP+4}")
    red8("v_add_f32", [OQ, OQ + 2])
    a(f"v_cvt_pk_bf16_f32 v{OQ}, v{OQ}, v{OQ}")
    a(f"v_cvt_pk_bf16_f32 v{OQ+2}, v{OQ+2}, v{OQ+2}")
    mk_a(K0 + 12, OQ); mk_a(K0 + 16, OQ + 2)
    for t in range(2):
        a(f"v_mfma_f32_16x16x32_bf16 {r4(OA)}, {r4(K0+12+4*t)}, {r4(WO0+4*t)}, {r4(OA) if t else 0}")
    epilogue(OA, K0 + 28, vE, "s67", "spub")
    stamp(11)
    a("s_branch L_exit")
    a("L_fin:")
    a("s_cmp_lg_u32 s3, 0")
    a("s_cbranch_scc1 L_exit")
    a("s_cmp_ge_u32 s2, 144")
    a("s_cbranch_scc1 L_exit")
    a("v_lshlrev_b32 v17, 2, v0")
    a("s_lshl_b32 s69, s2, 3")
    srd(a, 44, 4, 1152)
    a(f"buffer_load_dword v16, v17, s[44:47], s69 offen")
    srd(a, 56, 22, 1152)
    a("s_lshl_b32 s67, s2, 13")
    a(f"s_add_u32 s67, s67, {SD + 144*8192}")
    a("s_add_u32 s68, s67, 4096")
    F0 = V0
    def fissue():
        for n in range(8):
            a(f"buffer_load_dwordx4 {r4(F0+4*n)}, v{vL16}, s[36:39], s{67 + n//4} offen offset:{(n%4)*1024} sc1")
    def fsum(d0):
        for s_ in (16, 8, 4):
            for b in range(0, s_, 4):
                for e in (0, 2): a(f"v_add_f32 v{F0+b+e}, v{F0+b+e}, v{F0+b+s_+e}")
        for m in ("quad_perm:[2,3,0,1]", "row_ror:4", "row_ror:8"):
            for e in (0, 2): a(f"v_add_f32_dpp v{F0+e}, v{F0+e}, v{F0+e} {m} {FULL}")
        for sw in ("v_permlane16_swap_b32", "v_permlane32_swap_b32"):
            for e in (0, 2): a(f"v_mov_b32 v{F0+e+1}, v{F0+e}")
            for e in (0, 2): a(f"{sw} v{F0+e+1}, v{F0+e}")
            for e in (0, 2): a(f"v_add_f32 v{F0+e}, v{F0+e}, v{F0+e+1}")
        for e in (0, 2):
            a(f"v_cvt_pk_bf16_f32 v{F0+e}, v{F0+e}, v{F0+e}")
            a(f"v_and_b32 v{d0+e//2}, 0xffff0000, v{F0+e}")
    ftags = [F0 + 2 * i + 1 for i in range(16)]
    poll(fissue, ftags, list(range(K0 + 8, K0 + 16)))
    stamp(9)
    fsum(K0)
    a(f"s_sub_u32 s67, s67, {144*8192}")
    a(f"s_sub_u32 s68, s68, {144*8192}")
    fissue()
    for e in range(2):
        silu(K0 + e, K0 + 2 + e)
        rnd(K0 + e)
    a(f"v_lshlrev_b32 v{K0+2}, 16, v16")
    a(f"v_and_b32 v{K0+3}, 0xffff0000, v16")
    a("s_waitcnt vmcnt(0)")
    poll(fissue, ftags, list(range(K0 + 8, K0 + 16)), first_issued=True)
    stamp(10)
    fsum(K0 + 4)
    for e in range(2):
        a(f"v_mul_f32 v{K0+4+e}, v{K0+4+e}, v{K0+e}")
        rnd(K0 + 4 + e)
        a(f"v_add_f32 v{K0+4+e}, v{K0+4+e}, v{K0+2+e}")
    a(f"v_cvt_pk_bf16_f32 v{K0+4}, v{K0+4}, v{K0+5}")
    a("s_mov_b64 exec, 3")
    a(f"buffer_store_dword v{K0+4}, v17, s[56:59], s69 offen")
    a("s_cmp_lg_u32 s2, 0")
    a("s_cbranch_scc1 L_f2")
    a("s_mov_b64 exec, 1")
    a(f"v_mov_b32 v{K0}, s{sT}")
    a(f"buffer_store_dword v{K0}, v17, s[36:39], 0 offen sc1")
    a("L_f2:")
    stamp(11)
    a("L_exit:")
    if stamps:
        a("s_waitcnt vmcnt(0)")
        stamp(12)
        a("s_getreg_b32 s100, hwreg(HW_REG_XCC_ID)")
        a("s_getreg_b32 s101, hwreg(HW_REG_HW_ID)")
        a("s_lshl4_add_u32 s67, s2, s3")
        a("s_lshl_b32 s67, s67, 7")
        a(f"s_add_u32 s67, s67, {STAMP}")
        a("s_mov_b64 exec, 1")
        a("v_mov_b32 v17, 0")
        a("s_waitcnt lgkmcnt(0)")
        for i in range(0, 14, 2):
            for k in range(4): a(f"v_mov_b32 v{K0+k+4*(i//2)}, s{74+2*i+k}")
            a(f"buffer_store_dwordx4 {r4(K0+4*(i//2))}, v17, s[36:39], s67 offen offset:{i*8}")
    a("L_end:")
    a("s_endpgm")
    s = wrap([f"; @launch grid=(256,1,1) block=(1024,1,1) lds={LDS}"], a.text(), [descriptor(KN, 128, 102)])
    open(out, "w").write(s)
    return a
if __name__ == "__main__":
    import build
    cfgs = eval(sys.argv[1])
    for name, kw in cfgs.items():
        a = gen(out=name + ".s", **kw)
        build.build(name + ".s", name + ".co")
        print("built", name, "lines", len(a.l), "nops", a.nops)
```

```python
import sys
from hz import *
QP, GU, XR, OP, DP, FP, STAMP = 0x10000, 0x20000, 0x40000, 0x100000, 0x200000, 0x300000, 0x800000
WSREC = 0x1000000
XN, QL, MLW, HL, CNT, P1L, OL = 0, 2560, 3072, 3328, 3584, 4096, 8192
OLS = 1040
SL = OL + 16 * OLS
SROW = 768
LDS = SL + 32 * SROW + 256
LOG2E = 0x3fb8aa3b
SCALE = 0x3db504f3
FULL = "row_mask:0xf bank_mask:0xf"

def gen(out="k3.s", NV1=4, stamps=False, pol="nt", spin=20000, slp=1, strip="", force=None, wprio=2, fslp=1):
    a = HAsm()
    kernel_begin(a)
    K0, V0, QB, W0, SC = 20, 52, 84, 88, 112
    P1 = V0
    vL16, vK, vW, vM, vE = 1, 2, 3, 4, 8
    sT, sH, sJ, sKV, sU = 60, 61, 62, 63, 73
    keep = None if not strip else strip.split(",")
    def on(k): return keep is None or k in keep
    def stamp(i):
        if stamps: a(f"s_memrealtime s[{74+2*i}:{75+2*i}]")
    def sp(n): a(f"s_setprio {n}")
    def r4(b): return f"v[{b}:{b+3}]"
    def r2(b): return f"v[{b}:{b+1}]"
    def allred(op, x, t, rows=True, inrow=True):
        if inrow:
            for m in ("quad_perm:[1,0,3,2]", "quad_perm:[2,3,0,1]", "row_half_mirror", "row_mirror"):
                a(f"{op}_dpp v{x}, v{x}, v{x} {m} {FULL}")
        if rows:
            for sw in ("v_permlane16_swap_b32", "v_permlane32_swap_b32"):
                a(f"v_mov_b32 v{t}, v{x}")
                a(f"{sw} v{t}, v{x}")
                a(f"{op} v{x}, v{x}, v{t}")
    def red8(op, xs):
        for m in ("quad_perm:[1,0,3,2]", "quad_perm:[2,3,0,1]", "row_half_mirror"):
            for x in xs: a(f"{op}_dpp v{x}, v{x}, v{x} {m} {FULL}")
    def red4(op, xs):
        for m in ("quad_perm:[1,0,3,2]", "quad_perm:[2,3,0,1]"):
            for x in xs: a(f"{op}_dpp v{x}, v{x}, v{x} {m} {FULL}")
    def tagcheck(tags, tmp, retry):
        tags = list(tags)
        if len(tags) % 2: tags.append(tags[-1])
        accs = []
        for i in range(0, len(tags), 2):
            a(f"v_bitop3_b32 v{tmp[i//2]}, v{tags[i]}, v{tags[i+1]}, s{sT} bitop3:0x7e")
            accs.append(tmp[i // 2])
        while len(accs) > 1:
            n = []; i = 0
            while i < len(accs):
                if i + 2 < len(accs):
                    a(f"v_or3_b32 v{accs[i]}, v{accs[i]}, v{accs[i+1]}, v{accs[i+2]}"); n.append(accs[i]); i += 3
                elif i + 1 < len(accs):
                    a(f"v_or_b32 v{accs[i]}, v{accs[i]}, v{accs[i+1]}"); n.append(accs[i]); i += 2
                else:
                    n.append(accs[i]); i += 1
            accs = n
        a(f"v_cmp_ne_u32 vcc, 0, v{accs[0]}")
        a(f"s_cbranch_vccnz {retry}")
    cold = []
    def poll(issue, tags, tmp, sl):
        chk, retry, done = a.label("PC"), a.label("PR"), a.label("PD")
        a(f"s_mov_b32 s70, {spin}")
        a(f"{chk}:")
        tagcheck(tags, tmp, retry)
        a(f"{done}:")
        def blk():
            a(f"{retry}:")
            a("s_sub_u32 s70, s70, 1")
            a(f"s_cbranch_scc1 {done}")
            if sl: a(f"s_sleep {sl}")
            issue()
            a("s_waitcnt vmcnt(0)")
            a(f"s_branch {chk}")
        cold.append(blk)
    def poll2(ld, t0, t1, sl):
        chk, retry, done, s1, s2 = a.label("PC"), a.label("PR"), a.label("PD"), a.label("PS"), a.label("PS")
        a(f"s_mov_b32 s70, {spin}")
        a(f"{chk}:")
        a(f"v_cmp_ne_u32 vcc, s{sT}, v{t0}")
        a(f"v_cmp_ne_u32 s[68:69], s{sT}, v{t1}")
        a("s_nop 0")
        a("s_or_b64 s[66:67], vcc, s[68:69]")
        a(f"s_cbranch_scc1 {retry}")
        a(f"{done}:")
        def blk():
            a(f"{retry}:")
            a("s_sub_u32 s70, s70, 1")
            a(f"s_cbranch_scc1 {done}")
            if sl: a(f"s_sleep {sl}")
            a("s_mov_b64 exec, vcc")
            a(f"s_cbranch_execz {s1}")
            ld(0)
            a(f"{s1}:")
            a("s_mov_b64 exec, s[68:69]")
            a(f"s_cbranch_execz {s2}")
            ld(1)
            a(f"{s2}:")
            a("s_mov_b64 exec, -1")
            a("s_waitcnt vmcnt(0)")
            a(f"s_branch {chk}")
        cold.append(blk)
    def mk_a(dst, xx):
        for r in range(4): a(f"v_and_b32 v{dst+r}, v{xx}, v{vM+r}")
    def lstore(kind, ins):
        if not on(kind): return
        l1, l2 = a.label("LS"), a.label("LS")
        a(f"s_cmp_lg_u32 s{sU}, 0")
        a(f"s_cbranch_scc1 {l1}")
        a(ins)
        a(f"{l2}:")
        def blk():
            a(f"{l1}:")
            a(ins + " sc1")
            a(f"s_branch {l2}")
        cold.append(blk)
    def kload(t):
        a(f"buffer_load_dwordx4 {r4(K0+4*t)}, v{vK}, s[28:31], s{sKV if t < 4 else 64} offen offset:{(t%4)*1024} {pol}")
    def vload(t):
        a(f"buffer_load_dwordx4 {r4(V0+4*t)}, v{vL16}, s[32:35], s{sKV if t < 4 else 64} offen offset:{(t%4)*1024} {pol}")
    def rnd(x):
        a(f"v_cvt_pk_bf16_f32 v{x}, v{x}, v{x}")
        a(f"v_and_b32 v{x}, 0xffff0000, v{x}")
    def silu(x, t):
        a(f"v_mul_f32 v{t}, 0xbfb8aa3b, v{x}")
        a(f"v_exp_f32 v{t}, v{t}")
        a(f"v_add_f32 v{t}, 1.0, v{t}")
        a(f"v_rcp_f32 v{t}, v{t}")
        a(f"v_mul_f32 v{x}, v{x}, v{t}")
    def mktag():
        a(f"s_mul_i32 s{sT}, s{sT}, 0x9E3779B1")
        a(f"s_add_u32 s{sT}, s{sT}, 0x7F4A7C15")

    a("s_cmp_ge_u32 s2, 256")
    a("s_cbranch_scc1 L_end")
    a("s_load_dwordx16 s[4:19], s[0:1], 0")
    a("s_load_dwordx8 s[20:27], s[0:1], 64")
    if stamps:
        for i in range(76, 102): a(f"s_mov_b32 s{i}, 0")
    stamp(0)
    a("v_lshrrev_b32 v9, 6, v0")
    a("v_and_b32 v0, 63, v0")
    a("v_readfirstlane_b32 s3, v9")
    a(f"v_lshlrev_b32 v{vL16}, 4, v0")
    a("v_lshrrev_b32 v10, 4, v0")
    a("v_bfe_u32 v11, v0, 2, 2")
    a("v_and_b32 v12, 3, v0")
    a(f"v_lshlrev_b32 v{vK}, 8, v11")
    a(f"v_lshl_add_u32 v{vK}, v10, 6, v{vK}")
    a(f"v_lshl_add_u32 v{vK}, v12, 4, v{vK}")
    a(f"s_and_b32 s{sH}, s2, 15")
    a(f"s_lshr_b32 s{sJ}, s2, 4")
    a(f"s_lshl_b32 s{sKV}, s{sH}, 21")
    a(f"s_lshl_b32 s64, s{sJ}, 17")
    a(f"s_add_u32 s{sKV}, s{sKV}, s64")
    a("s_lshl_b32 s64, s3, 13")
    a(f"s_add_u32 s{sKV}, s{sKV}, s64")
    a(f"s_add_u32 s64, s{sKV}, 4096")
    a("s_mov_b32 s30, 33554432"); a("s_mov_b32 s31, 0x20000")
    a("s_mov_b32 s34, 33554432"); a("s_mov_b32 s35, 0x20000")
    a(f"s_mov_b32 s38, {WSREC}"); a("s_mov_b32 s39, 0x20000")
    a("s_mov_b32 s46, 1152"); a("s_mov_b32 s47, 0x20000")
    a("s_mov_b32 s43, 0x20000"); a("s_mov_b32 s51, 0x20000")
    a("v_and_b32 v13, 7, v0")
    a("v_lshrrev_b32 v14, 3, v0")
    a(f"s_and_b32 s65, s{sH}, 7")
    a(f"s_lshr_b32 s66, s{sH}, 3")
    a("s_mul_i32 s67, s65, 9")
    a(f"s_add_u32 s67, s67, s{sJ}")
    a(f"s_lshl2_add_u32 s68, s{sH}, s{sJ}")
    a("s_sub_u32 s68, s68, 9")
    a(f"s_mul_i32 s71, s66, {4608*8}")
    a(f"s_add_u32 s71, s71, {GU}")
    a(f"s_cmp_lt_u32 s{sJ}, 9")
    a("s_cselect_b32 s67, s67, s68")
    a(f"s_cselect_b32 s71, s71, {QP}")
    a("s_movk_i32 s69, 8192")
    a("s_cselect_b32 s69, 9216, s69")
    a("s_mul_i32 s42, s69, 576")
    a("s_lshl_b32 s68, s67, 9")
    a("s_add_u32 s71, s71, s68")
    a("s_mul_i32 s68, s3, 72")
    a("s_mul_i32 s68, s68, s69")
    a("s_lshl_b32 s67, s67, 7")
    a("s_add_u32 s68, s68, s67")
    a(f"v_mul_u32_u24 v{vW}, s69, v14")
    a(f"v_lshl_add_u32 v{vW}, v13, 4, v{vW}")
    a("s_lshl_b32 s69, s69, 3")
    a("v_lshlrev_b32 v17, 1, v0")
    a("s_waitcnt lgkmcnt(0)")
    a(f"s_load_dword s{sT}, s[26:27], 0")
    a("s_mov_b32 s28, s6"); a("s_and_b32 s29, s7, 0xffff")
    a("s_mov_b32 s44, s4"); a("s_and_b32 s45, s5, 0xffff")
    a("s_cmp_ge_u32 s3, 8")
    a("s_cbranch_scc1 L_RK")
    a(f"s_cmp_ge_u32 s{sJ}, 13")
    a("s_cbranch_scc1 L_RK")
    sp(3)
    X = K0
    a("s_cmp_lg_u32 s66, 0")
    a("s_cselect_b32 s40, s18, s16")
    a("s_cselect_b32 s41, s19, s17")
    a(f"s_cmp_lt_u32 s{sJ}, 9")
    a("s_cselect_b32 s40, s40, s10")
    a("s_cselect_b32 s41, s41, s11")
    a("s_and_b32 s41, s41, 0xffff")
    for i in range(9):
        a(f"buffer_load_ushort v{X+i}, v17, s[44:47], 0 offen offset:{i*128}")
    for t in range(9):
        a(f"buffer_load_dwordx4 {r4(P1+4*t)}, v{vW}, s[40:43], s68 offen {pol}")
        if t < 8: a("s_add_u32 s68, s68, s69")
    a("s_barrier")
    def common_setup():
        a("s_mov_b32 s32, s8"); a("s_and_b32 s33, s9, 0xffff")
        a("s_mov_b32 s36, s26"); a("s_and_b32 s37, s27, 0xffff")
        a("v_and_b32 v15, 1, v0")
        a("v_lshlrev_b32 v15, 4, v15")
        a("v_mov_b32 v16, 0xffff")
        a("v_lshlrev_b32 v15, v15, v16")
        a("v_lshrrev_b32 v16, 1, v13")
        for r in range(4):
            a(f"v_cmp_eq_u32 vcc, {r}, v16")
            a(f"v_cndmask_b32 v{vM+r}, 0, v15, vcc")
    common_setup()
    a("s_waitcnt vmcnt(9)")
    stamp(1)
    for i in range(9): a(f"v_lshlrev_b32 v{X+i}, 16, v{X+i}")
    S, Tm = X + 10, X + 11
    a(f"v_add_f32 v{S}, v{X}, v{X+1}")
    for i in range(2, 9): a(f"v_add_f32 v{S}, v{S}, v{X+i}")
    allred("v_add_f32", S, Tm)
    a(f"v_mul_f32 v{S}, 0x3ae38e39, v{S}")
    Q2 = X + 12
    a(f"v_sub_f32 v{Tm}, v{X}, v{S}")
    a(f"v_mul_f32 v{Q2}, v{Tm}, v{Tm}")
    for i in range(1, 9):
        a(f"v_sub_f32 v{Tm}, v{X+i}, v{S}")
        a(f"v_fmac_f32 v{Q2}, v{Tm}, v{Tm}")
    allred("v_add_f32", Q2, Tm)
    a(f"v_mul_f32 v{Q2}, 0x3ae38e39, v{Q2}")
    rnd(S); rnd(Q2)
    a(f"v_add_f32 v{Q2}, 0x3727c5ac, v{Q2}")
    rnd(Q2)
    a(f"v_sqrt_f32 v{Q2}, v{Q2}")
    rnd(Q2)
    a(f"v_rcp_f32 v{Q2}, v{Q2}")
    a("v_lshlrev_b32 v17, 2, v0")
    for i in range(9): a(f"v_sub_f32 v{X+i}, v{X+i}, v{S}")
    for i in range(9): rnd(X + i)
    for i in range(9):
        a(f"v_mul_f32 v{X+i}, v{X+i}, v{Q2}")
        a(f"v_cvt_pk_bf16_f32 v{X+i}, v{X+i}, v{X+i}")
        a(f"ds_write_b32 v17, v{X+i} offset:{XN + i*256}")
    a("s_mul_i32 s72, s3, 288")
    a("v_lshl_add_u32 v18, v14, 2, s72")
    XX, AT, DD = X, X + 20, X + 28
    for t in range(0, 10, 2):
        a(f"ds_read2_b32 v[{XX+t}:{XX+t+1}], v18 offset0:{8*t} offset1:{8*t+8}")
    a("v_lshrrev_b32 v19, 1, v10")
    a("v_lshlrev_b32 v19, 8, v19")
    a("v_lshl_add_u32 v19, v13, 5, v19")
    a("v_and_b32 v18, 1, v10")
    a("v_lshl_add_u32 v19, v18, 4, v19")
    a("s_lshl_b32 s72, s3, 9")
    a("v_add_u32 v19, s72, v19")
    a("v_mov_b32 v18, 1")
    a("v_mov_b32 v16, 0")
    a("s_waitcnt lgkmcnt(0)")
    mktag()
    for t in range(9):
        mk_a(AT + 4 * (t & 1), XX + t)
        a(f"s_waitcnt vmcnt({8-t})")
        a(f"v_mfma_f32_16x16x32_bf16 {r4(DD)}, {r4(AT+4*(t&1))}, {r4(P1+4*t)}, {r4(DD) if t else 0}")
    a("s_mov_b32 exec_lo, 0x00ff00ff")
    a("s_mov_b32 exec_hi, 0xff00ff00")
    a(f"ds_write_b128 v19, {r4(DD)} offset:{P1L}")
    a("s_mov_b64 exec, 1")
    a(f"ds_add_rtn_u32 v18, v16, v18 offset:{CNT}")
    a("s_mov_b64 exec, -1")
    a("s_waitcnt lgkmcnt(0)")
    a("v_readfirstlane_b32 s72, v18")
    a("s_cmp_lg_u32 s72, 7")
    a("s_cbranch_scc1 L_K")
    R = SC
    a(f"v_add_u32 v17, {P1L}, v17")
    for i in range(8):
        a(f"ds_read2st64_b32 {r2(R+2*i)}, v17 offset0:{2*i} offset1:{2*i+1}")
    a("v_lshlrev_b32 v17, 3, v0")
    a("s_waitcnt lgkmcnt(0)")
    for s_ in (8, 4, 2, 1):
        for i in range(s_): a(f"v_add_f32 v{R+i}, v{R+i}, v{R+i+s_}")
    rnd(R)
    a(f"v_mov_b32 v{R+1}, s{sT}")
    if on("S1"): a(f"buffer_store_dwordx2 {r2(R)}, v17, s[36:39], s71 offen sc1")
    a("s_branch L_K")
    a("L_RK:")
    a("v_mov_b32 v16, 0")
    a(f"ds_write_b32 v16, v16 offset:{CNT}")
    a("s_waitcnt lgkmcnt(0)")
    a("s_barrier")
    sp(2)
    for t in range(8): kload(t)
    common_setup()
    mktag()
    a(f"s_cmp_lt_u32 s{sJ}, 13")
    a("s_cbranch_scc1 L_W")
    a("s_cmp_lg_u32 s3, 1")
    a("s_cbranch_scc1 L_W")
    a("s_getreg_b32 s72, hwreg(HW_REG_XCC_ID)")
    a(f"s_lshl2_add_u32 s67, s{sH}, s{sJ}")
    a("s_lshl_b32 s67, s67, 7")
    a(f"s_add_u32 s67, s67, {XR - 13*128}")
    a("v_lshlrev_b32 v17, 3, v0")
    a(f"v_mov_b32 v{SC}, s72")
    a(f"v_mov_b32 v{SC+1}, s{sT}")
    a("s_mov_b64 exec, 0xffff")
    if on("S1"): a(f"buffer_store_dwordx2 {r2(SC)}, v17, s[36:39], s67 offen sc1")
    a("s_mov_b64 exec, -1")
    a("s_branch L_W")
    a("L_K:")
    stamp(2)
    sp(2)
    for t in range(8): kload(t)
    a("L_W:")
    if wprio != 2: sp(wprio)
    a(f"v_mul_u32_u24 v{vW}, 1152, v14")
    a(f"v_lshl_add_u32 v{vW}, v13, 4, v{vW}")
    a("s_mul_i32 s65, s65, 576")
    a("s_mul_i32 s66, s66, 288")
    a("s_add_u32 s65, s65, s66")
    a(f"s_min_u32 s66, s{sJ}, 11")
    a("s_mul_i32 s66, s66, 24")
    a("s_add_u32 s65, s65, s66")
    a(f"s_cmp_ge_u32 s{sJ}, 13")
    a("s_cselect_b32 s48, s12, s20")
    a("s_cselect_b32 s49, s13, s21")
    a("s_mov_b32 s50, 5308416")
    a("s_cselect_b32 s50, 4718592, s50")
    a("s_cbranch_scc1 L_wo")
    a("s_and_b32 s49, s49, 0xffff")
    a(f"s_cmp_eq_u32 s{sJ}, 12")
    a("s_cbranch_scc1 L_V")
    a("s_cmp_lt_u32 s3, 7")
    a("s_cbranch_scc1 L_V")
    a("s_mul_i32 s67, s65, 1152")
    a("s_lshl_b32 s68, s3, 7")
    a("s_add_u32 s67, s67, s68")
    a(f"s_sub_u32 s67, s67, {7*128}")
    for t in range(3):
        a(f"buffer_load_dwordx4 {r4(W0+4*t)}, v{vW}, s[48:51], s67 offen {pol}")
        if t < 2: a(f"s_add_u32 s67, s67, {8*1152}")
    a("s_branch L_V")
    a("L_wo:")
    a("s_and_b32 s49, s49, 0xffff")
    a(f"s_lshl4_add_u32 s67, s{sH}, s3")
    a(f"s_mul_i32 s67, s67, {16*1152}")
    a(f"s_mul_i32 s68, s{sJ}, 384")
    a("s_add_u32 s67, s67, s68")
    a(f"s_sub_u32 s67, s67, {13*384}")
    a(f"s_add_u32 s68, s67, {8*1152}")
    for t in range(2):
        for c in range(3):
            a(f"buffer_load_dwordx4 {r4(W0+8*c+4*t)}, v{vW}, s[48:51], s{67+t} offen offset:{c*128} {pol}")
    a("L_V:")
    sp(1)
    stamp(3)
    a("v_bfe_u32 v17, v0, 3, 1")
    a("v_lshlrev_b32 v19, 7, v17")
    a("s_lshl_b32 s66, s3, 3")
    a("v_add_u32 v18, s66, v19")
    a("v_mov_b32 v16, 0")
    a(f"ds_write_b32 v18, v16 offset:{MLW+4}")
    a("s_cmp_lg_u32 s3, 0")
    a("s_cbranch_scc1 L_V2")
    QR, HR = SC, SC + 8
    a("v_and_b32 v15, 31, v0")
    a("v_min_u32 v16, 23, v15")
    a("v_add_u32 v16, s65, v16")
    a("v_lshlrev_b32 v16, 3, v16")
    a("v_lshrrev_b32 v9, 5, v0")
    a(f"v_mul_u32_u24 v9, {4608*8}, v9")
    a(f"v_add3_u32 v16, v16, v9, {0}" if False else "v_add_u32 v16, v16, v9")
    a(f"v_add_u32 v16, {GU}, v16")
    a("v_min_u32 v9, 2, v13")
    a(f"s_lshl_b32 s67, s{sH}, 9")
    a(f"s_add_u32 s67, s67, {XR}")
    a("v_lshl_add_u32 v9, v9, 7, s67")
    a("v_cmp_eq_u32 vcc, 3, v14")
    a("v_cndmask_b32 v16, v16, v9, vcc")
    a(f"s_lshl_b32 s67, s{sH}, 11")
    a(f"s_add_u32 s67, s67, {QP}")
    def qissue():
        if not on("Pq"): return
        for n in range(2):
            a(f"buffer_load_dwordx4 {r4(QR+4*n)}, v{vL16}, s[36:39], s67 offen offset:{n*1024} sc1")
        a(f"buffer_load_dwordx2 {r2(HR)}, v16, s[36:39], 0 offen sc1")
    qissue()
    for t in range(NV1): vload(t)
    sp(3)
    a(f"s_waitcnt vmcnt({NV1})")
    poll(qissue, [QR + 1, QR + 3, QR + 5, QR + 7, HR + 1], [HR + 2, HR + 3, HR + 4], slp)
    a(f"v_perm_b32 v{QR}, v{QR+2}, v{QR}, s99" if False else f"v_cvt_pk_bf16_f32 v{QR}, v{QR}, v{QR+2}")
    a(f"v_cvt_pk_bf16_f32 v{QR+4}, v{QR+4}, v{QR+6}")
    a("v_lshlrev_b32 v15, 2, v0")
    a(f"ds_write2st64_b32 v15, v{QR}, v{QR+4} offset0:{QL//256} offset1:{QL//256+1}")
    a("s_getreg_b32 s72, hwreg(HW_REG_XCC_ID)")
    a(f"v_cmp_ne_u32 vcc, s72, v{HR}")
    a(f"v_mov_b32 v{HR+1}, v{HR}")
    a(f"v_permlane32_swap_b32 v{HR+1}, v{HR}" if False else f"v_permlane32_swap_b32 v{HR}, v{HR+1}")
    a("s_and_b32 s72, vcc_lo, 0xff000000")
    if force is not None: a(f"s_mov_b32 s72, {force}")
    silu(HR, HR + 2)
    rnd(HR)
    a(f"v_mul_f32 v{HR}, v{HR}, v{HR+1}")
    a(f"v_cvt_pk_bf16_f32 v{HR}, v{HR}, v{HR}")
    a(f"v_writelane_b32 v{HR}, s72, 31")
    a("s_mov_b64 exec, 0xffffffff")
    a(f"ds_write_b32 v15, v{HR} offset:{HL}")
    a("s_mov_b64 exec, -1")
    sp(1)
    a("s_branch L_b1")
    a("L_V2:")
    for t in range(NV1): vload(t)
    a("L_b1:")
    a("v_lshlrev_b32 v17, 8, v17")
    a("v_lshl_add_u32 v17, v10, 6, v17")
    a("v_lshl_add_u32 v17, v12, 4, v17")
    a("v_lshlrev_b32 v15, 2, v14")
    a(f"v_add_u32 v15, {HL}, v15")
    a("v_mov_b32 v9, 0xffff0000")
    a("s_waitcnt lgkmcnt(0)")
    stamp(4)
    a("s_barrier")
    HX = 120
    a(f"ds_read_b128 {r4(QB)}, v17 offset:{QL}")
    a(f"s_waitcnt vmcnt({NV1}) lgkmcnt(0)")
    stamp(5)
    Dt = lambda t: 124 if t == 0 else K0 + 4 * (t - 1)
    for t in range(8):
        a(f"v_mfma_f32_16x16x32_bf16 {r4(Dt(t))}, {r4(K0+4*t)}, {r4(QB)}, 0")
    a(f"ds_read2_b32 {r2(HX)}, v15 offset0:0 offset1:8")
    a(f"ds_read2_b32 {r2(HX+2)}, v15 offset0:16 offset1:24")
    for t in range(8):
        d = Dt(t)
        a(f"v_add_f32_dpp v{d}, v{d+1}, v{d} quad_perm:[1,1,1,1] {FULL}")
        a(f"v_add_f32_dpp v{d+2}, v{d+3}, v{d+2} quad_perm:[3,3,3,3] {FULL}")
    for t in range(8):
        d = Dt(t)
        a(f"v_add_f32_dpp v{d}, v{d+2}, v{d} quad_perm:[2,2,2,2] {FULL}")
    for t in range(8):
        d = Dt(t)
        a(f"v_cvt_pk_bf16_f32 v{d}, v{d}, v{d}")
    for t in range(8):
        d = Dt(t)
        a(f"v_and_b32_dpp v{SC+t}, v{d}, v9 quad_perm:[0,0,0,0] {FULL}")
    for t in range(8): a(f"v_mul_f32 v{SC+t}, {SCALE:#x}, v{SC+t}")
    for t in range(8): a(f"v_cvt_pk_bf16_f32 v{SC+t}, v{SC+t}, v{SC+t}")
    for t in range(8): a(f"v_and_b32 v{SC+t}, v9, v{SC+t}")
    Mx, Ls, T1, G = 124, 125, 126, 127
    a(f"v_max3_f32 v{Mx}, v{SC}, v{SC+1}, v{SC+2}")
    a(f"v_max3_f32 v{T1}, v{SC+3}, v{SC+4}, v{SC+5}")
    a(f"v_max3_f32 v{Mx}, v{Mx}, v{SC+6}, v{SC+7}")
    a(f"v_max_f32 v{Mx}, v{Mx}, v{T1}")
    allred("v_max_f32", Mx, T1, inrow=False)
    a(f"s_mov_b32 s65, {LOG2E:#x}")
    a(f"v_mul_f32 v{Mx}, s65, v{Mx}")
    for t in range(8): a(f"v_fma_f32 v{SC+t}, v{SC+t}, s65, -v{Mx}")
    for t in range(8): a(f"v_exp_f32 v{SC+t}, v{SC+t}")
    a(f"v_add_f32 v{Ls}, v{SC}, v{SC+1}")
    for t in range(2, 8): a(f"v_add_f32 v{Ls}, v{Ls}, v{SC+t}")
    allred("v_add_f32", Ls, T1, inrow=False)
    a("s_mov_b64 exec, 0x101")
    a(f"ds_write_b64 v18, v[{Mx}:{Ls}] offset:{MLW}")
    a("s_mov_b64 exec, -1")
    a("v_lshl_add_u32 v17, v13, 4, v19")
    a("s_waitcnt lgkmcnt(1)")
    a(f"v_readlane_b32 s{sU}, v{HX+3}, 63")
    a(f"s_cmp_ge_u32 s{sJ}, 12")
    a("s_cbranch_scc1 L_vr")
    a("s_cmp_lt_u32 s3, 7")
    a("s_cbranch_scc1 L_vr")
    for t in range(3): mk_a(K0 + 4 * t, HX + t)
    DA = K0 + 12
    for t in range(3):
        a(f"v_mfma_f32_16x16x32_bf16 {r4(DA)}, {r4(K0+4*t)}, {r4(W0+4*t)}, {r4(DA) if t else 0}")
    a(f"v_lshlrev_b32 v{vE}, 6, v13")
    a("v_and_b32 v16, 1, v10")
    a(f"v_lshl_add_u32 v{vE}, v16, 5, v{vE}")
    a("v_lshrrev_b32 v16, 1, v10")
    a(f"v_lshl_add_u32 v{vE}, v16, 4, v{vE}")
    a(f"s_mul_i32 s67, s{sH}, 12")
    a(f"s_add_u32 s67, s67, s{sJ}")
    a("s_mul_i32 s67, s67, 9")
    a("s_add_u32 s67, s67, s3")
    a("s_lshl_b32 s67, s67, 9")
    a(f"s_add_u32 s67, s67, {DP - 7*512}")
    o = W0 + 12
    a(f"v_mov_b32 v{o+1}, s{sT}")
    a(f"v_mov_b32 v{o+3}, s{sT}")
    a(f"v_permlane32_swap_b32 v{DA}, v{DA+2}")
    a(f"v_permlane32_swap_b32 v{DA+1}, v{DA+3}")
    a(f"v_add_f32_dpp v{o}, v{DA+2}, v{DA} row_ror:8 {FULL}")
    a(f"v_add_f32_dpp v{o+2}, v{DA+3}, v{DA+1} row_ror:8 {FULL}")
    a("s_mov_b32 exec_lo, 0x00ff00ff")
    a("s_mov_b32 exec_hi, 0x00ff00ff")
    lstore("Sd", f"buffer_store_dwordx4 {r4(o)}, v{vE}, s[36:39], s67 offen")
    a("s_mov_b64 exec, -1")
    a("L_vr:")
    for t in range(NV1, 8): vload(t)
    stamp(6)
    ML4 = QB
    a(f"s_mov_b32 s70, {max(spin, 1000)}")
    a("L_ml:")
    a(f"ds_read_b128 {r4(ML4)}, v17 offset:{MLW}")
    a("s_sub_u32 s70, s70, 1")
    a("s_cbranch_scc1 L_ml2")
    a("s_waitcnt lgkmcnt(0)")
    a(f"v_min_u32 v{T1}, v{ML4+1}, v{ML4+3}")
    a(f"v_cmp_eq_u32 vcc, 0, v{T1}")
    a("s_cbranch_vccnz L_ml")
    a("L_ml2:")
    a(f"v_max_f32 v{G}, v{ML4}, v{ML4+2}")
    red8("v_max_f32", [G])
    a(f"v_sub_f32 v{T1}, v{Mx}, v{G}")
    for e in (0, 2): a(f"v_sub_f32 v{ML4+e}, v{ML4+e}, v{G}")
    for e in (0, 2): a(f"v_exp_f32 v{ML4+e}, v{ML4+e}")
    a(f"v_exp_f32 v{T1}, v{T1}")
    a(f"v_mul_f32 v{ML4+1}, v{ML4}, v{ML4+1}")
    a(f"v_fmac_f32 v{ML4+1}, v{ML4+2}, v{ML4+3}")
    red8("v_add_f32", [ML4 + 1])
    a(f"v_rcp_f32 v{ML4}, v{ML4+1}")
    a(f"v_log_f32 v{ML4+1}, v{ML4+1}")
    a(f"v_mul_f32 v{T1}, v{T1}, v{ML4}")
    a(f"v_add_f32 v{G}, v{G}, v{ML4+1}")
    for t in range(8): a(f"v_mul_f32 v{SC+t}, v{SC+t}, v{T1}")
    for t in range(8): a(f"v_cvt_pk_bf16_f32 v{SC+t}, v{SC+t}, v{SC+t}")
    a("s_and_b32 s66, s3, 8")
    a(f"v_readlane_b32 s72, v{G}, s66")
    for t in range(8): mk_a(K0 + 4 * t, SC + t)
    OR = 120
    a(f"v_mov_b32 v{OR+2}, s72")
    a(f"v_mov_b32 v{OR+3}, s{sT}")
    a("v_lshrrev_b32 v17, 1, v10")
    a("v_lshlrev_b32 v17, 9, v17")
    a("v_and_b32 v19, 15, v0")
    a("v_lshl_add_u32 v17, v19, 5, v17")
    a("v_and_b32 v19, 1, v10")
    a("v_lshl_add_u32 v17, v19, 4, v17")
    a(f"s_mul_i32 s67, s3, {OLS}")
    a("v_add_u32 v17, s67, v17")
    a(f"v_mul_u32_u24 v18, {2*OLS}, v13")
    a("v_lshl_add_u32 v18, v14, 2, v18")
    a("s_lshl_b32 s67, s3, 6")
    a(f"s_add_u32 s67, s67, {OL}")
    a("v_add_u32 v18, s67, v18")
    a(f"v_add_u32 v19, {OLS}, v18")
    a("v_lshlrev_b32 v16, 4, v14")
    a(f"s_lshl4_add_u32 s71, s{sH}, s3")
    a("s_lshl_b32 s71, s71, 11")
    a(f"s_add_u32 s71, s71, {OP}")
    a(f"s_lshl_b32 s67, s{sJ}, 7")
    a("s_add_u32 s67, s67, s71")
    a("v_lshl_add_u32 v15, v13, 8, v16")
    OA = 124
    for t in range(8):
        a(f"s_waitcnt vmcnt({7 - t})")
        a(f"v_mfma_f32_16x16x32_bf16 {r4(OA)}, {r4(K0+4*t)}, {r4(V0+4*t)}, {r4(OA) if t else 0}")
    stamp(7)
    a(f"ds_write_b128 v17, {r4(OA)} offset:{OL}")
    a("s_waitcnt lgkmcnt(0)")
    a("s_barrier")
    a(f"ds_read2_b32 {r2(OR)}, v18 offset0:0 offset1:8")
    a(f"ds_read2_b32 {r2(K0)}, v19 offset0:0 offset1:8")
    a("s_waitcnt lgkmcnt(0)")
    a(f"v_add_f32 v{OR}, v{OR}, v{K0}")
    a(f"v_add_f32 v{OR+1}, v{OR+1}, v{K0+1}")
    red8("v_add_f32", [OR, OR + 1])
    a("s_mov_b32 exec_lo, 0x01010101")
    a("s_mov_b32 exec_hi, 0x01010101")
    lstore("So", f"buffer_store_dwordx4 {r4(OR)}, v16, s[36:39], s67 offen")
    a("s_mov_b64 exec, -1")
    stamp(8)
    a(f"s_cmp_lt_u32 s{sJ}, 13")
    a("s_cbranch_scc1 L_fin")
    OQ, DR = K0, K0 + 8
    def oload(i):
        if on("Po"): a(f"buffer_load_dwordx4 {r4(OQ+4*i)}, v15, s[36:39], s71 offen offset:{128*i} sc1")
    oload(0); oload(1)
    a(f"v_mul_u32_u24 v17, {3*4608}, v12")
    a("v_lshrrev_b32 v18, 2, v0")
    a("v_lshl_add_u32 v17, v18, 3, v17")
    a("s_min_u32 s66, s3, 11")
    a(f"s_mul_i32 s67, s{sH}, {12*4608}")
    a(f"s_mul_i32 s68, s{sJ}, 1536")
    a("s_add_u32 s67, s67, s68")
    a("s_lshl_b32 s68, s66, 7")
    a("s_add_u32 s67, s67, s68")
    a(f"s_add_u32 s56, s67, {DP - 13*1536}")
    a(f"s_add_u32 s57, s56, 4608")
    a(f"s_add_u32 s58, s56, 9216")
    def dissue():
        if on("Pd"):
            for i in range(3): a(f"buffer_load_dwordx2 {r2(DR+2*i)}, v17, s[36:39], s{56+i} offen sc1")
    dissue()
    a("v_lshrrev_b32 v19, 1, v10")
    a(f"v_mul_u32_u24 v19, {SROW}, v19")
    a("v_lshl_add_u32 v19, v13, 5, v19")
    a("v_and_b32 v16, 1, v10")
    a("v_lshl_add_u32 v19, v16, 4, v19")
    a(f"s_mul_i32 s67, s3, {2*SROW}")
    a("s_lshr_b32 s68, s3, 2")
    a("s_lshl_b32 s68, s68, 6")
    a("s_add_u32 s67, s67, s68")
    a("v_add_u32 v19, s67, v19")
    a(f"v_mul_u32_u24 v16, {8*SROW + 64}, v12")
    a("v_lshl_add_u32 v16, v18, 2, v16")
    a("s_lshl_b32 s67, s66, 6")
    a(f"s_add_u32 s67, s67, {SL}")
    a("v_add_u32 v16, s67, v16")
    a("v_lshrrev_b32 v9, 5, v0")
    a("v_lshlrev_b32 v9, 11, v9")
    a("v_and_b32 v18, 7, v18")
    a("v_lshl_add_u32 v9, v18, 4, v9")
    a(f"s_mul_i32 s67, s{sJ}, 12")
    a("s_add_u32 s67, s67, s66")
    a("s_lshl_b32 s67, s67, 12")
    a(f"s_lshl_b32 s68, s{sH}, 7")
    a("s_add_u32 s67, s67, s68")
    a(f"s_add_u32 s59, s67, {FP - 13*12*4096}")
    a("s_waitcnt vmcnt(0)")
    poll(dissue, [DR + 1, DR + 3, DR + 5], [DR + 6, DR + 7], slp)
    FS = 120
    a(f"v_add_f32 v{DR}, v{DR}, v{DR+2}")
    a(f"v_add_f32 v{FS+1}, v{DR}, v{DR+4}")
    red4("v_add_f32", [FS + 1])
    a(f"v_mov_b32 v{FS+2}, s{sT}")
    poll2(oload, OQ + 3, OQ + 7, slp)
    stamp(9)
    G = DR
    a(f"v_max_f32 v{G}, v{OQ+2}, v{OQ+6}")
    red8("v_max_f32", [G])
    for e in (2, 6): a(f"v_sub_f32 v{OQ+e}, v{OQ+e}, v{G}")
    for e in (2, 6): a(f"v_exp_f32 v{OQ+e}, v{OQ+e}")
    a(f"v_mul_f32 v{OQ}, v{OQ}, v{OQ+2}")
    a(f"v_mul_f32 v{OQ+1}, v{OQ+1}, v{OQ+2}")
    a(f"v_add_f32 v{OQ+2}, v{OQ+2}, v{OQ+6}")
    a(f"v_fmac_f32 v{OQ}, v{OQ+4}, v{OQ+6}")
    a(f"v_fmac_f32 v{OQ+1}, v{OQ+5}, v{OQ+6}")
    red8("v_add_f32", [OQ + 2, OQ, OQ + 1])
    a(f"v_rcp_f32 v{OQ+2}, v{OQ+2}")
    a(f"v_mul_f32 v{OQ}, v{OQ}, v{OQ+2}")
    a(f"v_mul_f32 v{OQ+1}, v{OQ+1}, v{OQ+2}")
    a(f"v_cvt_pk_bf16_f32 v{OQ}, v{OQ}, v{OQ}")
    a(f"v_cvt_pk_bf16_f32 v{OQ+1}, v{OQ+1}, v{OQ+1}")
    A0, SD = K0 + 16, V0
    mk_a(A0, OQ)
    for c in range(3):
        a(f"v_mfma_f32_16x16x32_bf16 {r4(SD+4*c)}, {r4(A0)}, {r4(W0+8*c)}, 0")
        if c == 0: mk_a(A0 + 4, OQ + 1)
    for c in range(3):
        a(f"v_mfma_f32_16x16x32_bf16 {r4(SD+4*c)}, {r4(A0+4)}, {r4(W0+8*c+4)}, {r4(SD+4*c)}")
    a("s_mov_b32 exec_lo, 0x00ff00ff")
    a("s_mov_b32 exec_hi, 0xff00ff00")
    for c in range(3):
        a(f"ds_write_b128 v19, {r4(SD+4*c)} offset:{SL + 256*c}")
    a("s_mov_b64 exec, -1")
    a("s_waitcnt lgkmcnt(0)")
    a("s_barrier")
    stamp(10)
    a("s_cmp_ge_u32 s3, 12")
    a("s_cbranch_scc1 L_exit")
    for i in range(4):
        a(f"ds_read2st64_b32 {r2(K0+2*i)}, v16 offset0:{6*i} offset1:{6*i+3}")
    a("s_waitcnt lgkmcnt(2)")
    a(f"v_add_f32 v{K0}, v{K0}, v{K0+1}")
    a(f"v_add_f32 v{K0+2}, v{K0+2}, v{K0+3}")
    a("s_waitcnt lgkmcnt(0)")
    a(f"v_add_f32 v{K0+4}, v{K0+4}, v{K0+5}")
    a(f"v_add_f32 v{K0+6}, v{K0+6}, v{K0+7}")
    a(f"v_add_f32 v{K0}, v{K0}, v{K0+2}")
    a(f"v_add_f32 v{K0+4}, v{K0+4}, v{K0+6}")
    a(f"v_add_f32 v{FS}, v{K0}, v{K0+4}")
    red4("v_add_f32", [FS])
    a("s_mov_b32 exec_lo, 0x11111111")
    a("s_mov_b32 exec_hi, 0x11111111")
    if on("Ss"): a(f"buffer_store_dwordx4 {r4(FS)}, v9, s[36:39], s59 offen sc1")
    stamp(11)
    a("s_branch L_exit")
    a("L_fin:")
    a("s_cmp_lg_u32 s3, 0")
    a("s_cbranch_scc1 L_exit")
    a("s_cmp_ge_u32 s2, 72")
    a("s_cbranch_scc1 L_exit")
    F0 = K0
    a("v_lshl_add_u32 v15, v13, 7, v16")
    a("s_lshl_b32 s71, s2, 11")
    a(f"s_add_u32 s71, s71, {FP}")
    def fload(i):
        if on("Pf"): a(f"buffer_load_dwordx4 {r4(F0+4*i)}, v15, s[36:39], s71 offen offset:{1024*i} sc1")
    a("v_lshlrev_b32 v17, 1, v14")
    a("s_lshl_b32 s72, s2, 4")
    a(f"buffer_load_ushort v18, v17, s[44:47], s72 offen")
    fload(0); fload(1)
    srd(a, 52, 22, 1152)
    a("s_waitcnt vmcnt(0)")
    a("v_lshlrev_b32 v18, 16, v18")
    poll2(fload, F0 + 3, F0 + 7, fslp)
    stamp(9)
    a(f"v_add_f32 v{F0+1}, v{F0+1}, v{F0+5}")
    a(f"v_add_f32 v{F0}, v{F0}, v{F0+4}")
    red8("v_add_f32", [F0 + 1, F0])
    rnd(F0 + 1)
    rnd(F0)
    silu(F0 + 1, F0 + 2)
    rnd(F0 + 1)
    a(f"v_mul_f32 v{F0}, v{F0}, v{F0+1}")
    rnd(F0)
    a(f"v_add_f32 v{F0}, v{F0}, v18")
    a(f"v_cvt_pk_bf16_f32 v{F0}, v{F0}, v{F0}")
    a("s_mov_b32 exec_lo, 0x01010101")
    a("s_mov_b32 exec_hi, 0x01010101")
    a(f"buffer_store_short v{F0}, v17, s[52:55], s72 offen")
    a("s_cmp_lg_u32 s2, 0")
    a("s_cbranch_scc1 L_f2")
    a("s_mov_b64 exec, 1")
    a(f"v_mov_b32 v{F0+4}, s{sT}")
    if on("St"): a(f"buffer_store_dword v{F0+4}, v17, s[36:39], 0 offen sc1")
    a("L_f2:")
    stamp(11)
    a("L_exit:")
    if stamps:
        a("s_waitcnt vmcnt(0)")
        stamp(12)
        a("s_getreg_b32 s100, hwreg(HW_REG_XCC_ID)")
        a("s_mov_b32 s101, s70")
        a("s_lshl4_add_u32 s67, s2, s3")
        a("s_lshl_b32 s67, s67, 7")
        a(f"s_add_u32 s67, s67, {STAMP}")
        a("s_mov_b64 exec, 1")
        a("v_mov_b32 v17, 0")
        a("s_waitcnt lgkmcnt(0)")
        for i in range(0, 14, 2):
            for k in range(4): a(f"v_mov_b32 v{K0+k+4*(i//2)}, s{74+2*i+k}")
            a(f"buffer_store_dwordx4 {r4(K0+4*(i//2))}, v17, s[36:39], s67 offen offset:{i*8}")
    a("L_end:")
    a("s_endpgm")
    for b in cold: b()
    s = wrap([f"; @launch grid=(256,1,1) block=(1024,1,1) lds={LDS}"], a.text(), [descriptor(KN, 128, 102)])
    open(out, "w").write(s)
    return a
if __name__ == "__main__":
    import build, json
    cfgs = eval(sys.argv[1])
    for name, kw in cfgs.items():
        a = gen(out=name + ".s", **kw)
        build.build(name + ".s", name + ".co")
        print("built", name, "lines", len(a.l), "nops", a.nops)
    print(" ".join(n + ".s" for n in cfgs))
    print(json.dumps(["work/" + n + e for n in cfgs for e in (".s", ".co")]))
```

```python
R1=(1,1,1,1,1,1,1,1,1,0,0,0,6,-5,-5,-5)
X1=(10,5,1,-5,0,-6,0,-5)
X2=(6,3,1,-3,0,-4,0,-3)
X3=(7,5,-1,-3,-1,-3,-1,-3)
R2=(1,1,1,1,1,1,1,1,1,1,0,0,5,-5,-5,-5)
X4=(11,4,4,-7,1,-9,3,-7)
X5=(11,7,3,-7,2,-10,1,-7)
X6=(11,3,8,-10,2,-11,6,-9)
H=dict(oh=1,fh=1,dh=1)
B=dict(RJ=R1,XD=X1,qb=1,oh=1,fh=1)
C=dict(race=1,**B)
D=dict(ib=1,race=1,qb=1,oh=1,fh=1)
def P(k,d=7): return tuple(d if i==k else -d//7 for i in range(8))
def XE(d): return (d,-d)*4
XA=(4,-2,4,-2,2,-4,2,-4)
XB=(6,-2,3,-3,2,-4,2,-4)
XC=(5,-1,5,-1,1,-5,1,-5)
XF=(4,0,4,0,0,-4,0,-4)
def PH(p,h): return (p+h,h-p,p+h,h-p,p-h,-p-h,p-h,-p-h)
```

```python
import sys
from hz import *
STAMP, RC, VT, TS, DY = 0x800000, 0x6C000, 0x100, 0x200000, 3336
import struct
def fhex(x): return hex(struct.unpack('<I', struct.pack('<f', x))[0])
BOFF = 0x80000
WSREC = 0x1000000
XN, QL, MLW, CNT, FLG, HL, P1L, OL = 0, 2560, 3072, 3328, 3332, 3584, 4096, 8192
OLS = 1040
SL = OL + 16 * OLS
SROW = 1024
LDS = SL + 8 * SROW
LOG2E = 0x3fb8aa3b
SCALE = 0x3db504f3
FULL = "row_mask:0xf bank_mask:0xf"

def gen(out="k10.s", NVB=4, stamps=False, pol="nt", spin=20000, slp=1, strip="", fslp=1, qslp=4, st2=0, b0=1, pre=0, mix=1, x2=1, dprio=0, qpos=6, qwD=4, qprio=3, oth=0, fth=0, dl=1, NS=2, hs="sc1", hl="sc0 sc1", loc=0, tl=1, BOFF=BOFF, cl=0, RJ=(0,)*16, XD=(0,)*8, fh=0, oh=0, dh=0, qh=0, kvh=0, qx=0, qb=0, race=0, rw=8, rneg=0, fa=0, oa=0, ib=0, dbg=0, dg=None, dgs=8, dw=None, amp=0, dyn=0, pw=9, dslp=2, lim=9.0, pb=208, tslp=2, ve=0, pk=0, vp=1, pad=0):
    QP, GU, OP, DP, FP = (0x1000, 0x11000, 0x100000, 0x35000, 0x70000) if race else (0x4000, 0x24000, 0x100000, 0x48000, 0x90000)
    assert not race or (oh and fh and not dh and not qx and not qh and b0 and tl and NVB == 4 and not pre)
    sR = 18
    a = HAsm()
    kernel_begin(a)
    K0, V0, QB, W0, SC = 20, 52, 84, 88, 112
    P1 = V0
    vL16, vK, vW, vM, vE = 1, 2, 3, 4, 8
    sT, sH, sJ, sKV, sU = 60, 61, 62, 63, 14
    sN, s9 = 16, 17
    K9, V9, S9 = W0 + 12, W0 + 16, 127
    assert sum(RJ) == 0 and sum(XD) == 0 and (mix or not any(XD))
    for j in range(16):
        for x in range(8):
            assert -16 <= RJ[j] + XD[x] <= (7 if j >= 13 else 16 if j == 12 else 12)
    keep = None if not strip else strip.split(",")
    def on(k): return keep is None or k in keep
    def stamp(i):
        if st2 and i in (10, 11): return
        if i >= 100:
            if not st2: return
            i -= 100
        if stamps or ((amp or dyn) and i == 0) or (dg is not None and i == dgs): a(f"s_memrealtime s[{74+2*i}:{75+2*i}]")
    def sp(n): a(f"s_setprio {n}")
    def r4(b): return f"v[{b}:{b+3}]"
    def r2(b): return f"v[{b}:{b+1}]"
    def allred(op, x, t, rows=True, inrow=True):
        if inrow:
            for m in ("quad_perm:[1,0,3,2]", "quad_perm:[2,3,0,1]", "row_half_mirror", "row_mirror"):
                a(f"{op}_dpp v{x}, v{x}, v{x} {m} {FULL}")
        if rows:
            for sw in ("v_permlane16_swap_b32", "v_permlane32_swap_b32"):
                a(f"v_mov_b32 v{t}, v{x}")
                a(f"{sw} v{t}, v{x}")
                a(f"{op} v{x}, v{x}, v{t}")
    def red8(op, xs):
        for m in ("quad_perm:[1,0,3,2]", "quad_perm:[2,3,0,1]", "row_half_mirror"):
            for x in xs: a(f"{op}_dpp v{x}, v{x}, v{x} {m} {FULL}")
    def red4(op, xs):
        for m in ("quad_perm:[1,0,3,2]", "quad_perm:[2,3,0,1]"):
            for x in xs: a(f"{op}_dpp v{x}, v{x}, v{x} {m} {FULL}")
    def tagcheck(tags, tmp, retry):
        tags = list(tags)
        if len(tags) % 2: tags.append(tags[-1])
        accs = []
        for i in range(0, len(tags), 2):
            a(f"v_bitop3_b32 v{tmp[i//2]}, v{tags[i]}, v{tags[i+1]}, s{sT} bitop3:0x7e")
            accs.append(tmp[i // 2])
        while len(accs) > 1:
            n = []; i = 0
            while i < len(accs):
                if i + 2 < len(accs):
                    a(f"v_or3_b32 v{accs[i]}, v{accs[i]}, v{accs[i+1]}, v{accs[i+2]}"); n.append(accs[i]); i += 3
                elif i + 1 < len(accs):
                    a(f"v_or_b32 v{accs[i]}, v{accs[i]}, v{accs[i+1]}"); n.append(accs[i]); i += 2
                else:
                    n.append(accs[i]); i += 1
            accs = n
        a(f"v_cmp_ne_u32 vcc, 0, v{accs[0]}")
        a(f"s_cbranch_vccnz {retry}")
    cold = []
    def poll(issue, tags, tmp, sl, key):
        chk, retry, done = a.label("PC"), a.label("PR"), a.label("PD")
        a(f"s_mov_b32 s70, {spin if all(on(k) for k in key.split(',')) else 0}")
        a(f"{chk}:")
        tagcheck(tags, tmp, retry)
        a(f"{done}:")
        def blk():
            a(f"{retry}:")
            a("s_sub_u32 s70, s70, 1")
            a(f"s_cbranch_scc1 {done}")
            if sl: a(f"s_sleep {sl}")
            issue()
            a("s_waitcnt vmcnt(0)")
            a(f"s_branch {chk}")
        cold.append(blk)
    def poll2(ld, t0, t1, sl, key, dn=None):
        chk, retry, done, s1, s2 = a.label("PC"), a.label("PR"), a.label("PD"), a.label("PS"), a.label("PS")
        a(f"s_mov_b32 s70, {spin if all(on(k) for k in key.split(',')) else 0}")
        a(f"{chk}:")
        a(f"v_cmp_ne_u32 vcc, s{sT}, v{t0}")
        a(f"v_cmp_ne_u32 s[68:69], s{sT}, v{t1}")
        a("s_nop 0")
        a("s_or_b64 s[66:67], vcc, s[68:69]")
        a(f"s_cbranch_scc1 {retry}")
        a(f"{done}:")
        def blk():
            a(f"{retry}:")
            a("s_sub_u32 s70, s70, 1")
            a(f"s_cbranch_scc1 {done}")
            if dn: dn(done)
            if sl: a(f"s_sleep {sl}")
            a("s_mov_b64 exec, vcc")
            a(f"s_cbranch_execz {s1}")
            ld(0)
            a(f"{s1}:")
            a("s_mov_b64 exec, s[68:69]")
            a(f"s_cbranch_execz {s2}")
            ld(1)
            a(f"{s2}:")
            a("s_mov_b64 exec, -1")
            a("s_waitcnt vmcnt(0)")
            a(f"s_branch {chk}")
        cold.append(blk)
    def pollm(issue, tags, tmp, sl, key, dn=None):
        chk, retry, done = a.label("PC"), a.label("PR"), a.label("PD")
        a(f"s_mov_b32 s70, {spin if all(on(k) for k in key.split(',')) else 0}")
        a(f"{chk}:")
        tagcheck(tags, tmp, retry)
        a(f"{done}:")
        def blk():
            a(f"{retry}:")
            a("s_sub_u32 s70, s70, 1")
            a(f"s_cbranch_scc1 {done}")
            if dn: dn(done)
            if sl: a(f"s_sleep {sl}")
            a("s_mov_b64 exec, vcc")
            issue()
            a("s_mov_b64 exec, -1")
            a("s_waitcnt vmcnt(0)")
            a(f"s_branch {chk}")
        cold.append(blk)
    def dense(issue, nld, sets, chk, copy, fin):
        lp = a.label("DL")
        a("s_mov_b64 exec, s[66:67]")
        for k, b in enumerate(sets):
            issue(b)
            if dl: a(f"s_sleep {dl}")
        a(f"{lp}:")
        for k, b in enumerate(sets):
            nx = a.label("DN")
            a(f"s_waitcnt vmcnt({nld * (len(sets) - 1)})")
            chk(b)
            a(f"s_cbranch_vccz {nx}")
            a("s_mov_b64 exec, vcc")
            copy(b)
            a("s_andn2_b64 s[66:67], s[66:67], vcc")
            a(f"s_cbranch_scc0 {fin}")
            a("s_mov_b64 exec, s[66:67]")
            a(f"{nx}:")
            issue(b)
            if dl: a(f"s_sleep {dl}")
        a("s_sub_u32 s70, s70, 1")
        a(f"s_cbranch_scc0 {lp}")
    def mk_a(dst, xx):
        for r in range(4): a(f"v_and_b32 v{dst+r}, v{xx}, v{vM+r}")
    def lstore(kind, ins):
        if not on(kind): return
        l1, l2 = a.label("LS"), a.label("LS")
        a(f"s_cmp_lg_u32 s{sU}, 0")
        a(f"s_cbranch_scc1 {l1}")
        a(ins)
        a(f"{l2}:")
        def blk():
            a(f"{l1}:")
            a(ins + " sc1")
            a(f"s_branch {l2}")
        cold.append(blk)
    def kvload(t, b0_, b9, va, srd_, zero):
        ld = lambda d, so, off: a(f"buffer_load_dwordx4 {r4(d)}, v{va}, s[{srd_}:{srd_+3}], s{so} offen offset:{off} {pol}")
        if t:
            ld(b0_ + 4 * t, sKV if t <= 4 else 64, ((t - 1) % 4) * 1024)
            return
        l7, l8 = a.label("KO"), a.label("KO")
        if zero:
            for r in (0, 2): a(f"v_mov_b64 {r2(b0_+r)}, 0")
            for r in (0, 2): a(f"v_mov_b64 {r2(b9+r)}, 0")
        a(f"s_cmp_lt_u32 s{sN}, 8")
        a(f"s_cbranch_scc1 {l7}")
        a(f"s_cmp_eq_u32 s{sN}, 8")
        a(f"s_cbranch_scc1 {l8}")
        ld(b9, s9, 1024 if dyn else 0)
        a(f"{l8}:")
        if dyn: ld(b0_, s9, 0)
        else: ld(b0_, 64, 3072)
        a(f"{l7}:")
    def kload(t): kvload(t, K0, K9, vK, 28, False)
    def vload(t, early=False):
        if early or not 1 <= t <= ve: kvload(t, V0, V9, vL16, 32, True)
    def kwait(n, top):
        n -= ve
        for st in range(top, 7, -1):
            a(f"s_waitcnt vmcnt({n + st - 8})")
            a(f"s_cmp_eq_u32 s{sN}, {st}")
            a("s_cbranch_scc1 L_q")
        a(f"s_waitcnt vmcnt({n - 1})")
    def pack(v): return sum((x & 255) << (8 * i) for i, x in enumerate(v))
    def kvaddr(rc=0):
        if kvh:
            assert mix and not any(RJ) and not any(XD)
            a("s_and_b32 s58, s2, 3")
            a(f"s_lshr_b32 s59, s{sJ}, 3")
            a("s_lshl1_add_u32 s58, s58, s59")
            a(f"s_lshl3_add_u32 s58, s{sH}, s58")
            a("s_lshl4_add_u32 s58, s58, s3")
            a("s_lshr_b32 s59, s2, 2")
            a(f"s_xor_b32 s59, s59, s{sH}")
            a("s_and_b32 s59, s59, 1")
            if kvh == 2: a("s_xor_b32 s59, s59, 1")
            a("s_lshl1_add_u32 s58, s58, s59")
            a(f"s_lshl_b32 s{sKV}, s58, 13")
            a(f"s_mov_b32 s{sN}, 8")
            a(f"s_add_u32 s64, s{sKV}, 4096")
            a(f"s_add_u32 s{s9}, s{sKV}, 8192")
            return
        PR = [sum(RJ[:j]) for j in range(16)]
        C = [sum(XD[:k]) for k in range(8)]
        def tab(dst, vals, idx):
            if len(vals) == 16:
                for e in range(2):
                    a(f"s_mov_b32 s{56+e}, {pack(vals[4*e:4*e+4]):#x}")
                    a(f"s_cselect_b32 s{56+e}, {pack(vals[8+4*e:12+4*e]):#x}, s{56+e}")
            else:
                for e in range(2): a(f"s_mov_b32 s{56+e}, {pack(vals[4*e:4*e+4]):#x}")
            a(f"s_lshr_b64 s[56:57], s[56:57], s{idx}")
            a(f"s_sext_i32_i8 s{dst}, s56")
        if dyn:
            assert mix and not any(XD) and max(RJ[13:]) <= -3 and RJ[12] <= 6 and max(RJ[:12]) <= 2 and min(RJ) >= -6
            a(f"s_lshl4_add_u32 s59, s{sJ}, s3")
            a("s_mul_i32 s58, s59, 7")
            a(f"s_lshl_b32 s{sKV}, s{sH}, 11")
            a(f"s_add_u32 s59, s59, s{sKV}")
            a(f"s_add_u32 s{sKV}, s{sKV}, s58")
            a(f"s_lshl_b32 s{sKV}, s{sKV}, 10")
            a(f"s_add_u32 s64, s{sKV}, 4096")
            if rc: a(f"s_waitcnt lgkmcnt({2 if ib == 1 else 1})")
            a(f"s_lshl_b32 s58, s{sJ}, 3")
            a(f"s_cmp_ge_u32 s{sJ}, 8")
            tab(s9, PR, 58)
            a(f"s_cmp_ge_u32 s{sJ}, 8")
            tab(sN, RJ, 58)
            a(f"s_add_i32 s{s9}, s{s9}, s59")
            return
        a(f"s_lshl_b32 s58, s{sJ}, 3")
        a(f"s_cmp_ge_u32 s{sJ}, 8")
        tab(sKV, PR, 58)
        a(f"s_cmp_ge_u32 s{sJ}, 8")
        tab(sN, RJ, 58)
        if rc == 2: a("s_waitcnt lgkmcnt(1)")
        if any(XD):
            a("s_lshl_b32 s58, s2, 3")
            tab(59, XD, 58)
            a(f"s_add_i32 s{sN}, s{sN}, s59")
            tab(59, C[1:] + C[:1], 58)
            a(f"s_sub_i32 s{sKV}, s{sKV}, s59")
            if rc == 3: a("s_waitcnt lgkmcnt(1)")
            a(f"s_lshl_b32 s58, s{sH}, 3")
            tab(59, C[1:] + C[:1], 58)
            a(f"s_add_i32 s{sKV}, s{sKV}, s59")
        if rc == 1: a(f"s_waitcnt lgkmcnt({2 if ib == 1 else 1})")
        a(f"s_lshl4_add_u32 s58, s{sH}, s{sJ}")
        a("s_lshl4_add_u32 s58, s58, s3")
        a(f"s_lshl3_add_u32 s{sKV}, s58, s{sKV}")
        a(f"s_min_i32 s58, s3, s{sN}")
        a("s_max_i32 s58, s58, 0")
        a(f"s_add_i32 s{sKV}, s{sKV}, s58")
        a(f"s_sub_i32 s58, s3, s{sN}")
        a("s_sub_i32 s59, s58, 16")
        a("s_max_i32 s59, s59, 0")
        a(f"s_sub_i32 s{sKV}, s{sKV}, s59")
        a(f"s_lshl_b32 s{sKV}, s{sKV}, 10")
        a("s_ashr_i32 s58, s58, 4")
        a(f"s_sub_i32 s{sN}, 8, s58")
        a(f"s_add_u32 s64, s{sKV}, 4096")
        a(f"s_add_u32 s{s9}, s{sKV}, 8192")
    def rnd(x):
        a(f"v_cvt_pk_bf16_f32 v{x}, v{x}, v{x}")
        a(f"v_and_b32 v{x}, 0xffff0000, v{x}")
    def silu(x, t):
        a(f"v_mul_f32 v{t}, 0xbfb8aa3b, v{x}")
        a(f"v_exp_f32 v{t}, v{t}")
        a(f"v_add_f32 v{t}, 1.0, v{t}")
        a(f"v_rcp_f32 v{t}, v{t}")
        a(f"v_mul_f32 v{x}, v{x}, v{t}")
    def mktag():
        a(f"s_mul_i32 s{sT}, s{sT}, 0x9E3779B1")
        a(f"s_add_u32 s{sT}, s{sT}, 0x7F4A7C15")

    a("s_cmp_ge_u32 s2, 256")
    a("s_cbranch_scc1 L_end")
    a("s_load_dwordx16 s[4:19], s[0:1], 0")
    a("s_load_dwordx8 s[20:27], s[0:1], 64")
    if stamps:
        for i in range(76, 102): a(f"s_mov_b32 s{i}, 0")
    stamp(0)
    a("v_lshrrev_b32 v9, 6, v0")
    a("v_and_b32 v0, 63, v0")
    a("v_readfirstlane_b32 s3, v9")
    a(f"v_lshlrev_b32 v{vL16}, 4, v0")
    a("v_lshrrev_b32 v10, 4, v0")
    a("v_bfe_u32 v11, v0, 2, 2")
    a("v_and_b32 v12, 3, v0")
    a(f"v_lshlrev_b32 v{vK}, 8, v11")
    a(f"v_lshl_add_u32 v{vK}, v10, 6, v{vK}")
    a(f"v_lshl_add_u32 v{vK}, v12, 4, v{vK}")
    a(f"s_lshr_b32 s{sJ}, s2, 4")
    if mix:
        a(f"s_add_u32 s{sH}, s2, s{sJ}")
        a(f"s_and_b32 s{sH}, s{sH}, 15")
    else:
        a(f"s_and_b32 s{sH}, s2, 15")
    a("s_mov_b32 s30, 33554432"); a("s_mov_b32 s31, 0x20000")
    a("s_mov_b32 s34, 33554432"); a("s_mov_b32 s35, 0x20000")
    a(f"s_mov_b32 s38, {WSREC}"); a("s_mov_b32 s39, 0x20000")
    a("s_mov_b32 s46, 1152"); a("s_mov_b32 s47, 0x20000")
    a("s_mov_b32 s43, 0x20000"); a("s_mov_b32 s51, 0x20000")
    a("v_and_b32 v13, 7, v0")
    a("v_lshrrev_b32 v14, 3, v0")
    a(f"s_and_b32 s65, s{sH}, 7")
    a(f"s_lshr_b32 s66, s{sH}, 3")
    a("s_mul_i32 s67, s65, 9")
    a(f"s_add_u32 s67, s67, s{sJ}")
    a(f"s_lshl2_add_u32 s68, s{sH}, s{sJ}")
    a("s_sub_u32 s68, s68, 9")
    if qh:
        a("s_and_b32 s72, s68, 0x38")
        a("s_add_u32 s72, s72, s68")
        a("s_lshl_b32 s72, s72, 10")
    else:
        a(f"s_lshl_b32 s72, s68, {11 if qx else 10}")
    a(f"s_add_u32 s72, s72, {QP}")
    a("s_and_b32 s71, s67, 3")
    a("s_lshl1_add_u32 s71, s71, s66")
    a("s_mul_i32 s71, s71, 18")
    a("s_lshr_b32 s65, s67, 2")
    a("s_add_u32 s71, s71, s65")
    a("s_lshl_b32 s71, s71, 10")
    a(f"s_add_u32 s71, s71, {GU}")
    a(f"s_cmp_lt_u32 s{sJ}, 9")
    a("s_cselect_b32 s67, s67, s68")
    a("s_cselect_b32 s71, s71, s72")
    a("s_movk_i32 s69, 8192")
    a("s_cselect_b32 s69, 9216, s69")
    a("s_mul_i32 s42, s69, 576")
    a("s_and_b32 s65, s67, 3")
    a("s_lshl3_add_u32 s65, s65, s3")
    a("s_mul_i32 s65, s65, 18")
    a("s_mul_i32 s68, s65, s69")
    a("s_lshr_b32 s67, s67, 2")
    a("s_lshl_b32 s67, s67, 9")
    a("s_add_u32 s68, s68, s67")
    a("v_lshrrev_b32 v15, 5, v0")
    a("v_and_b32 v16, 31, v0")
    a(f"v_mul_u32_u24 v{vW}, s69, v15")
    a(f"v_lshl_add_u32 v{vW}, v16, 4, v{vW}")
    a("s_lshl_b32 s69, s69, 1")
    a("v_lshlrev_b32 v17, 1, v0")
    a("s_waitcnt lgkmcnt(0)")
    stamp(110)
    if not tl: a(f"s_load_dword s{sT}, s[26:27], 0")
    a("s_mov_b32 s28, s6"); a("s_and_b32 s29, s7, 0xffff")
    a("s_mov_b32 s44, s4"); a("s_and_b32 s45, s5, 0xffff")
    a("s_cmp_ge_u32 s3, 8")
    a("s_cbranch_scc1 L_RK")
    a(f"s_cmp_ge_u32 s{sJ}, 13")
    a("s_cbranch_scc1 L_RK")
    sp(3)
    if tl: a(f"s_load_dword s{sT}, s[26:27], 0")
    X = K0
    a("s_cmp_lg_u32 s66, 0")
    a("s_cselect_b32 s40, s18, s16")
    a("s_cselect_b32 s41, s19, s17")
    a(f"s_cmp_lt_u32 s{sJ}, 9")
    a("s_cselect_b32 s40, s40, s10")
    a("s_cselect_b32 s41, s41, s11")
    a("s_and_b32 s41, s41, 0xffff")
    if x2:
        a(f"buffer_load_dwordx4 {r4(X+12)}, v{vL16}, s[44:47], 0 offen")
        a(f"buffer_load_ushort v{X+8}, v17, s[44:47], 0 offen offset:1024")
    else:
        for i in range(9):
            a(f"buffer_load_ushort v{X+i}, v17, s[44:47], 0 offen offset:{i*128}")
    for t in range(9):
        a(f"buffer_load_dwordx4 {r4(P1+4*t)}, v{vW}, s[40:43], s68 offen {pol}")
        if t < 8: a("s_add_u32 s68, s68, s69")
    stamp(111)
    a("s_barrier")
    def common_setup():
        a("s_mov_b32 s32, s8"); a("s_and_b32 s33, s9, 0xffff")
        a("s_mov_b32 s36, s26"); a("s_and_b32 s37, s27, 0xffff")
        a("v_and_b32 v15, 1, v0")
        a("v_lshlrev_b32 v15, 4, v15")
        a("v_mov_b32 v16, 0xffff")
        a("v_lshlrev_b32 v15, v15, v16")
        a("v_lshrrev_b32 v16, 1, v13")
        for r in range(4):
            a(f"v_cmp_eq_u32 vcc, {r}, v16")
            a(f"v_cndmask_b32 v{vM+r}, 0, v15, vcc")
    common_setup()
    kvaddr()
    a("s_waitcnt vmcnt(9)")
    stamp(1)
    if x2:
        for i in range(4):
            a(f"v_lshlrev_b32 v{X+2*i}, 16, v{X+12+i}")
            a(f"v_and_b32 v{X+2*i+1}, 0xffff0000, v{X+12+i}")
        a(f"v_lshlrev_b32 v{X+8}, 16, v{X+8}")
    else:
        for i in range(9): a(f"v_lshlrev_b32 v{X+i}, 16, v{X+i}")
    S, Tm = X + 10, X + 11
    a(f"v_add_f32 v{S}, v{X}, v{X+1}")
    for i in range(2, 9): a(f"v_add_f32 v{S}, v{S}, v{X+i}")
    allred("v_add_f32", S, Tm)
    a(f"v_mul_f32 v{S}, 0x3ae38e39, v{S}")
    Q2 = X + 12
    a(f"v_sub_f32 v{Tm}, v{X}, v{S}")
    a(f"v_mul_f32 v{Q2}, v{Tm}, v{Tm}")
    for i in range(1, 9):
        a(f"v_sub_f32 v{Tm}, v{X+i}, v{S}")
        a(f"v_fmac_f32 v{Q2}, v{Tm}, v{Tm}")
    allred("v_add_f32", Q2, Tm)
    a(f"v_mul_f32 v{Q2}, 0x3ae38e39, v{Q2}")
    rnd(S); rnd(Q2)
    a(f"v_add_f32 v{Q2}, 0x3727c5ac, v{Q2}")
    rnd(Q2)
    a(f"v_sqrt_f32 v{Q2}, v{Q2}")
    rnd(Q2)
    a(f"v_rcp_f32 v{Q2}, v{Q2}")
    a("v_lshlrev_b32 v17, 2, v0")
    a("v_lshlrev_b32 v18, 5, v0")
    for i in range(9): a(f"v_sub_f32 v{X+i}, v{X+i}, v{S}")
    for i in range(9): rnd(X + i)
    for i in range(9):
        a(f"v_mul_f32 v{X+i}, v{X+i}, v{Q2}")
        a(f"v_cvt_pk_bf16_f32 v{X+i}, v{X+i}, v{X+i}")
        if not x2 or i == 8: a(f"ds_write_b32 v17, v{X+i} offset:{XN + i*256}")
        elif i in (3, 7): a(f"ds_write_b128 v18, {r4(X+i-3)} offset:{XN + (i-3)*4}")
    a("s_lshl_b32 s72, s65, 2")
    a("v_lshrrev_b32 v18, 5, v0")
    a("v_lshl_add_u32 v18, v18, 2, s72")
    XX, M1, AT, DD = X, X + 16, X + 20, X + 28
    for t in range(0, 10, 2):
        a(f"ds_read2_b32 v[{XX+t}:{XX+t+1}], v18 offset0:{2*t} offset1:{2*t+2}")
    a("s_mov_b32 vcc_lo, 0xff0000ff")
    a("s_mov_b32 vcc_hi, 0xff0000ff")
    for r in range(4): a(f"v_cndmask_b32 v{M1+r}, 0, v{vM+r}, vcc")
    a("s_lshl_b32 s72, s3, 10")
    a(f"v_add_u32 v19, s72, v{vL16}")
    if qb:
        a("v_and_b32 v17, 32, v0")
        a("v_bfe_u32 v18, v0, 1, 4")
        a("v_add_u32 v17, v17, v18")
        a("v_and_b32 v18, 1, v0")
        a("v_lshl_add_u32 v17, v18, 4, v17")
        a("v_lshlrev_b32 v17, 4, v17")
    a("v_mov_b32 v18, 1")
    a("v_mov_b32 v16, 0")
    a("s_waitcnt lgkmcnt(0)")
    mktag()
    for t in range(9):
        for r in range(4): a(f"v_and_b32 v{AT+4*(t&1)+r}, v{XX+t}, v{M1+r}")
        a(f"s_waitcnt vmcnt({8-t})")
        a(f"v_mfma_f32_16x16x32_bf16 {r4(DD)}, {r4(AT+4*(t&1))}, {r4(P1+4*t)}, {r4(DD) if t else 0}")
    a(f"ds_write_b128 v19, {r4(DD)} offset:{P1L}")
    a("s_mov_b64 exec, 1")
    a(f"ds_add_rtn_u32 v18, v16, v18 offset:{CNT}")
    a("s_mov_b64 exec, -1")
    a("s_waitcnt lgkmcnt(0)")
    a("v_readfirstlane_b32 s72, v18")
    a("s_cmp_lg_u32 s72, 7")
    a("s_cbranch_scc1 L_K")
    R = V0
    def tagbits(d):
        a(f"v_lshlrev_b32 v{d}, 3, v12")
        a(f"v_lshrrev_b32 v{d}, v{d}, s{sT}")
        for r in range(1, 4): a(f"v_lshrrev_b32 v{d+r}, {2*r}, v{d}")
    if qb:
        for i in range(8):
            a(f"ds_read_b128 {r4(R+4*i)}, v17 offset:{P1L + 1024*i}")
        tagbits(K0)
    else:
        for i in range(8):
            a(f"ds_read_b128 {r4(R+4*i)}, v{vL16} offset:{P1L + 1024*i}")
        a("v_lshrrev_b32 v19, 1, v10")
        a("v_lshlrev_b32 v19, 9, v19")
        a("v_and_b32 v18, 15, v0")
        a("v_lshl_add_u32 v19, v18, 5, v19")
        a("v_and_b32 v18, 1, v10")
        a("v_lshl_add_u32 v19, v18, 4, v19")
    for i in range(4):
        a(f"s_waitcnt lgkmcnt({6-2*i})")
        for r in (0, 2): a(f"v_pk_add_f32 {r2(R+8*i+r)}, {r2(R+8*i+r)}, {r2(R+8*i+4+r)}")
        if i & 1:
            for r in (0, 2): a(f"v_pk_add_f32 {r2(R+8*i-8+r)}, {r2(R+8*i-8+r)}, {r2(R+8*i+r)}")
    if qx:
        assert not qh
        a(f"s_cmp_lt_u32 s{sJ}, 9")
        a("s_cbranch_scc1 L_gp")
        a(f"v_pk_add_f32 {r2(R+4)}, {r2(R+2)}, {r2(R+18)}")
        a(f"v_pk_add_f32 {r2(R)}, {r2(R)}, {r2(R+16)}")
        a(f"v_mov_b32 v{R+6}, s{sT}")
        a(f"v_mov_b32 v{R+2}, s{sT}")
        if on("S1"):
            n = 3 if qx == 1 else 4
            a(f"buffer_store_dwordx{n} v[{R+4}:{R+3+n}], v19, s[36:39], s71 offen offset:1024 sc1")
            a(f"buffer_store_dwordx{n} v[{R}:{R-1+n}], v19, s[36:39], s71 offen sc1")
        a("s_branch L_K")
        a("L_gp:")
    for r in (0, 2): a(f"v_pk_add_f32 {r2(R+r)}, {r2(R+r)}, {r2(R+16+r)}")
    for r in range(4):
        if qb: a(f"v_bfi_b32 v{R+r}, 3, v{K0+r}, v{R+r}")
        else: a(f"v_mov_b32_sdwa v{R+r}, s{sT} dst_sel:BYTE_0 dst_unused:UNUSED_PRESERVE src0_sel:BYTE_{r}")
    if on("S1"): a(f"buffer_store_dwordx4 {r4(R)}, v{vL16 if qb else 19}, s[36:39], s71 offen sc1")
    if qh:
        a(f"s_cmp_lt_u32 s{sJ}, 9")
        a("s_cbranch_scc1 L_K")
        a("s_add_u32 s71, s71, 8192")
        a(f"buffer_store_dwordx4 {r4(R)}, v19, s[36:39], s71 offen sc1")
    a("s_branch L_K")
    a("L_RK:")
    a("v_mov_b32 v16, 0")
    a("v_mov_b32 v17, 0")
    a("v_lshlrev_b32 v18, 3, v0")
    a(f"ds_write_b64 v18, v[16:17] offset:{MLW}")
    if race:
        a("s_lshr_b32 s56, s2, 3")
        a("s_lshl_b32 s56, s56, 7")
        a(f"s_add_u32 s56, s56, {RC}")
        a("s_add_u32 s57, s56, 8192")
        if not ib: a("s_mov_b32 s15, 0x5eed71c3")
        a("s_cmp_lt_u32 s2, 64")
        a("s_cselect_b32 s58, s3, 0")
        a(f"s_cmp_lg_u32 s58, {rw}")
        a("s_waitcnt lgkmcnt(0)")
        a("s_cbranch_scc1 L_nr0")
        stamp(1)
        if stamps: a("s_waitcnt lgkmcnt(0)")
        a("s_load_dword s19, s[26:27], s56")
        a("s_load_dwordx2 s[14:15], s[26:27], s57" if ib == 1 else "s_load_dword s15, s[26:27], s57")
        a("L_nr0:")
    if dyn:
        assert race and tl
        a(f"s_cmp_lg_u32 s3, {pw}")
        a("s_cbranch_scc1 L_nr1")
        a(f"s_load_dword s{sT}, s[26:27], 0")
        a(f"s_sub_u32 s56, s2, {pb}")
        a("s_cmp_ge_u32 s56, 8")
        a("s_cbranch_scc1 L_nr1")
        a("s_mov_b32 s36, s26"); a("s_and_b32 s37, s27, 0xffff")
        a(f"s_lshl3_add_u32 s56, s56, {TS}")
        a("v_mov_b32 v16, s74")
        a("v_lshlrev_b32 v18, 8, v0")
        a("s_waitcnt lgkmcnt(0)")
        a(f"s_mul_i32 s57, s{sT}, 0x9E3779B1")
        a("s_add_u32 s57, s57, 0x7F4A7C15")
        a("v_mov_b32 v17, s57")
        a("buffer_store_dwordx2 v[16:17], v18, s[36:39], s56 offen sc1")
        a("L_nr1:")
    kvaddr(race)
    if race:
        if ib:
            a("s_getreg_b32 s56, hwreg(HW_REG_IB_STS, 8, 4)")
            a(f"s_cmp_lg_u32 s56, {2 if ib == 1 else 1}")
        else:
            a("s_cmp_lg_u32 s15, 0x5eed71c3")
        a(f"s_cselect_b32 s{sR}, 1, 0")
        a("s_barrier")
    elif b0:
        a("s_waitcnt lgkmcnt(0)")
        a("s_barrier")
    if dyn:
        a(f"s_cmp_eq_u32 s3, {pw}")
        a("s_cbranch_scc1 L_PW")
        def blk():
            a("L_PW:")
            sp(3)
            if pk:
                for t in range(1, 8): kload(t)
            common_setup()
            a("s_and_b32 s57, s2, 7")
            a("s_sub_u32 s58, s2, 1")
            a("s_and_b32 s58, s58, 7")
            a(f"s_and_b32 s59, s{sH}, 7")
            a(f"s_mov_b32 s70, {spin}")
            a("s_and_b32 s56, s2, 63")
            a("s_lshl_b32 s56, s56, 8")
            a(f"s_add_u32 s56, s56, {TS}")
            a("s_waitcnt lgkmcnt(0)")
            mktag()
            a("L_PW1:")
            a("s_load_dwordx16 s[76:91], s[26:27], s56 glc")
            a("s_waitcnt lgkmcnt(0)")
            for i in range(8): a(f"s_xor_b32 s{77+2*i}, s{77+2*i}, s{sT}")
            for i in range(1, 8): a(f"s_or_b32 s77, s77, s{77+2*i}")
            a("s_cbranch_scc0 L_PW2")
            if tslp: a(f"s_sleep {tslp}")
            a("s_sub_u32 s70, s70, 1")
            a("s_cbranch_scc0 L_PW1")
            a("L_PW2:")
            for i in range(8): a(f"v_writelane_b32 v16, s{76+2*i}, {i}")
            a("v_subrev_u32 v16, s76, v16")
            a("v_cvt_f32_i32 v16, v16")
            a("v_mov_b32 v18, v16")
            red8("v_add_f32", [18])
            a("v_fmac_f32 v16, 0xbe000000, v18")
            a("v_and_b32 v18, 0x7fffffff, v16")
            red8("v_max_f32", [18])
            a("v_rcp_f32 v18, v18")
            a(f"v_mul_f32 v18, {fhex(lim)}, v18")
            a(f"v_min_f32 v18, {fhex(dyn / 1000)}, v18")
            a("v_mul_f32 v16, v18, v16")
            for sh in (1, 2, 4): a(f"v_add_f32_dpp v16, v16, v16 row_shr:{sh} {FULL} bound_ctrl:0")
            a("v_rndne_f32 v16, v16")
            a("v_cvt_i32_f32 v16, v16")
            a("v_writelane_b32 v16, 0, 7")
            a("v_readlane_b32 s57, v16, s57")
            a("v_readlane_b32 s58, v16, s58")
            a("v_readlane_b32 s59, v16, s59")
            a("s_sub_i32 s58, s58, s57")
            a("s_sub_i32 s59, s57, s59")
            a("s_lshl_b32 s59, s59, 8")
            a("s_add_i32 s58, s58, s59")
            a(f"s_add_i32 s58, s58, {64 + 128 * 256}")
            a("v_mov_b32 v16, 0")
            a("v_mov_b32 v17, s58")
            a(f"ds_write_b32 v16, v17 offset:{DY}")
            if pk: stamp(2)
            a("s_branch L_V" if pk else "s_branch L_K")
        cold.append(blk)
    if tl: a(f"s_load_dword s{sT}, s[26:27], 0")
    sp(2)
    for t in range(1 if dyn else 0, 8): kload(t)
    if not b0:
        a("s_waitcnt lgkmcnt(0)")
        a("s_barrier")
    common_setup()
    if tl: a("s_waitcnt lgkmcnt(0)")
    mktag()
    if race:
        a(f"s_cmp_lg_u32 s3, {rw}")
        a("s_cbranch_scc1 L_V")
        a("s_cmp_ge_u32 s2, 64")
        a("s_cbranch_scc1 L_V")
        a("s_getreg_b32 s56, hwreg(HW_REG_XCC_ID, 2, 1)")
        a(f"s_xor_b32 s{sR}, s{sR}, s56")
        a(f"s_xor_b32 s56, s{sR}, s{sT}")
        a("v_mov_b32 v16, s56")
        a("s_lshl_b32 s56, s2, 2")
        a("s_mov_b64 exec, 1")
        a(f"buffer_store_dword v16, off, s[36:39], s56 offset:{VT} sc1")
        a("s_mov_b64 exec, -1")
    a("s_branch L_V")
    a("L_K:")
    stamp(2)
    sp(2)
    for t in range(1 if dyn else 0, 8): kload(t)
    a("L_V:")
    if dyn:
        assert ve <= 3 and NVB == 4
        sp(vp if ve else 2)
        for t in range(1, ve + 1): vload(t, True)
        a("v_mov_b32 v16, 0")
        a(f"s_mov_b32 s70, {spin * 4}")
        a("L_ds:")
        a(f"ds_read_b32 v15, v16 offset:{DY}")
        a("s_waitcnt lgkmcnt(0)")
        a("v_readfirstlane_b32 s56, v15")
        a("s_cmp_eq_u32 s56, 0")
        a("s_cbranch_scc1 L_dr")
        a("L_dd:")
        def blk():
            a("L_dr:")
            a(f"s_mov_b32 s56, {64 + 128 * 256}")
            a("s_sub_u32 s70, s70, 1")
            a("s_cbranch_scc1 L_dd")
            a(f"s_sleep {dslp}")
            a("s_branch L_ds")
        cold.append(blk)
        a("s_and_b32 s57, s56, 255")
        a("s_lshr_b32 s56, s56, 8")
        a(f"s_add_i32 s{sN}, s{sN}, s57")
        a(f"s_sub_i32 s{sN}, s{sN}, 64")
        a(f"s_add_i32 s{s9}, s{s9}, s56")
        a(f"s_min_i32 s58, s3, s{sN}")
        a("s_max_i32 s58, s58, 0")
        a(f"s_add_i32 s{s9}, s{s9}, s58")
        a(f"s_sub_i32 s58, s3, s{sN}")
        a("s_sub_i32 s59, s58, 16")
        a("s_max_i32 s59, s59, 0")
        a(f"s_sub_i32 s{s9}, s{s9}, s59")
        a(f"s_add_i32 s{s9}, s{s9}, {1792 - 128}")
        a(f"s_lshl_b32 s{s9}, s{s9}, 10")
        a("s_ashr_i32 s58, s58, 4")
        a(f"s_sub_i32 s{sN}, 8, s58")
        if ve: sp(2)
        kload(0)
    stamp(3)
    sC, sUn, sW = 73, 59, 58
    a(f"s_mul_i32 s65, s{sJ}, 11")
    a("s_lshr_b32 s65, s65, 5")
    a(f"s_lshl2_add_u32 s{sUn}, s65, s3")
    a(f"s_add_u32 s{sUn}, s{sUn}, 4")
    a(f"s_and_b32 s{sUn}, s{sUn}, 15")
    a("s_mul_i32 s66, s65, 3")
    a(f"s_sub_u32 s66, s{sJ}, s66")
    a(f"s_lshl4_add_u32 s69, s{sJ}, s{sH}")
    a(f"s_sub_u32 s69, s69, {13*16}")
    a(f"s_cmp_ge_u32 s{sJ}, 13")
    a("s_cselect_b32 s48, s20, s12")
    a("s_cselect_b32 s49, s21, s13")
    a("s_mov_b32 s50, 4718592")
    a("s_cselect_b32 s50, 5308416, s50")
    a("s_and_b32 s49, s49, 0xffff")
    if not qb:
        a("s_mov_b32 s54, 0x0c0c0400")
        a("s_mov_b32 s55, 0x04000c0c")
    QR, QA = W0, W0 + 20
    def fpoll(ld, key):
        chk, retry, done = a.label("PC"), a.label("PR"), a.label("PD")
        a(f"s_mov_b32 s70, {spin if all(on(k) for k in key.split(',')) else 0}")
        a(f"{chk}:")
        if qb:
            for r in (0, 2): a(f"v_xor_b32 v{QR+4+r//2}, v{QR+r}, v{QR+8+r}")
            for r in (0, 2): a(f"v_bitop3_b32 v{QR+4+r//2}, v{QR+r+1}, v{QR+9+r}, v{QR+4+r//2} bitop3:0xbe")
            a(f"v_bitop3_b32 v{QR+4}, v{QR+4}, v{QR+5}, 3 bitop3:0xa8")
            a(f"v_cmp_ne_u32 vcc, 0, v{QR+4}")
        else:
            a(f"v_perm_b32 v{QR+4}, v{QR+1}, v{QR}, s54")
            a(f"v_perm_b32 v{QR+5}, v{QR+3}, v{QR+2}, s55")
            a(f"v_or_b32 v{QR+4}, v{QR+4}, v{QR+5}")
            a(f"v_cmp_ne_u32 vcc, s{sT}, v{QR+4}")
        a(f"s_cbranch_vccnz {retry}")
        a(f"{done}:")
        def blk():
            a(f"{retry}:")
            a("s_sub_u32 s70, s70, 1")
            a(f"s_cbranch_scc1 {done}")
            if slp: a(f"s_sleep {slp}")
            if qb:
                a("s_wqm_b64 exec, vcc")
            else:
                a("s_mov_b64 exec, vcc")
            ld()
            a("s_mov_b64 exec, -1")
            a("s_waitcnt vmcnt(0)")
            a(f"s_branch {chk}")
        cold.append(blk)
        for r in range(4): a(f"v_and_b32 v{QR+r}, {'-4' if qb else '0xffffff00'}, v{QR+r}")
        for sw in ("v_permlane16_swap_b32", "v_permlane32_swap_b32"):
            for r in range(4): a(f"v_mov_b32 v{QR+4+r}, v{QR+r}")
            for r in range(4): a(f"{sw} v{QR+4+r}, v{QR+r}")
            for r in (0, 2): a(f"v_pk_add_f32 {r2(QR+r)}, {r2(QR+r)}, {r2(QR+4+r)}")
    a("s_cmp_ge_u32 s3, 4")
    a("s_cbranch_scc1 L_V2")
    sp(1)
    def qld():
        if not on("Pq"): return
        if qx:
            for e in range(2): a(f"buffer_load_dwordx3 v[{QR+4*e}:{QR+4*e+2}], v{QA}, s[36:39], s67 offen offset:{1024*e} sc1")
        else: a(f"buffer_load_dwordx4 {r4(QR)}, v{QA}, s[36:39], s67 offen sc1")
    for t in range(qpos): vload(t)
    if qh:
        a(f"s_and_b32 s67, s{sH}, 14")
        a(f"s_add_u32 s67, s67, s{sH}")
        a("s_lshr_b32 s68, s2, 1")
        a("s_and_b32 s68, s68, 2")
        if qh == 2: a("s_xor_b32 s68, s68, 2")
        a("s_add_u32 s67, s67, s68")
        a("s_lshl4_add_u32 s67, s67, s3")
    elif qx:
        a(f"s_lshl_b32 s67, s{sH}, 5")
        a("s_add_u32 s67, s67, s3")
    else:
        a(f"s_lshl4_add_u32 s67, s{sH}, s3")
    a("s_lshl_b32 s67, s67, 8")
    a(f"s_add_u32 s67, s67, {QP}")
    a("v_and_b32 v15, 15, v0")
    a(f"v_lshlrev_b32 v{QA}, {11 if qx else 10}, v10")
    a(f"v_lshl_add_u32 v{QA}, v15, 4, v{QA}")
    a("s_lshl_b32 s68, s3, 7")
    a("v_lshl_add_u32 v15, v15, 3, s68")
    if qb: tagbits(QR + 8)
    a(f"s_cmp_ge_u32 s{sJ}, 13")
    a("s_cbranch_scc1 L_qD")
    sp(qprio)
    qld()
    sp(1)
    for t in range(qpos, 8): vload(t)
    stamp(4)
    a(f"s_waitcnt vmcnt({8-qpos})")
    a("L_q1:")
    def blk():
        a("L_qD:")
        for t in range(qpos, 8): vload(t)
        stamp(4)
        a(f"s_waitcnt vmcnt({qwD})")
        sp(qprio)
        qld()
        a("s_waitcnt vmcnt(0)")
        a("s_branch L_q1")
    cold.append(blk)
    sp(qprio)
    if qx:
        pollm(qld, [QR + 2, QR + 6], [QR + 3], slp, "S1,Pq")
        for sw in ("v_permlane16_swap_b32", "v_permlane32_swap_b32"):
            for r in range(4): a(f"v_mov_b32 v{QR+8+r}, v{QR+(r&1)+2*(r&2)}")
            for r in range(4): a(f"{sw} v{QR+8+r}, v{QR+(r&1)+2*(r&2)}")
            for r in (0, 2): a(f"v_pk_add_f32 {r2(QR+2*r)}, {r2(QR+2*r)}, {r2(QR+8+r)}")
        a(f"v_cvt_pk_bf16_f32 v{QR}, v{QR}, v{QR+1}")
        a(f"v_cvt_pk_bf16_f32 v{QR+1}, v{QR+4}, v{QR+5}")
    else:
        fpoll(qld, "S1,Pq")
        a(f"v_cvt_pk_bf16_f32 v{QR}, v{QR}, v{QR+1}")
        a(f"v_cvt_pk_bf16_f32 v{QR+1}, v{QR+2}, v{QR+3}")
    a("v_mov_b32 v16, 0")
    a("v_mov_b32 v17, 1")
    a("s_mov_b64 exec, 0xffff")
    a(f"ds_write_b64 v15, {r2(QR)} offset:{QL}")
    a("s_mov_b64 exec, 1")
    a(f"ds_add_u32 v16, v17 offset:{FLG}")
    a("s_mov_b64 exec, -1")
    a(f"s_mov_b32 s{sC}, 0")
    sp(1)
    a("s_branch L_q")
    a("L_V2:")
    sp(1)
    for t in range(NVB): vload(t)
    a(f"v_mul_u32_u24 v{vW}, 1152, v14")
    a(f"v_lshl_add_u32 v{vW}, v13, 4, v{vW}")
    a(f"s_cmp_ge_u32 s{sJ}, 13")
    a("s_cbranch_scc1 L_cD")
    a(f"s_mov_b32 s{sC}, 0")
    a(f"s_cmp_eq_u32 s{sJ}, 12")
    a("s_cbranch_scc1 L_cA")
    a("s_cmp_lt_u32 s3, 12")
    a("s_cbranch_scc1 L_cA")
    a(f"s_mov_b32 s{sC}, 1")
    a(f"s_lshl4_add_u32 s{sW}, s{sH}, s{sUn}")
    a(f"s_mul_i32 s{sW}, s{sW}, {16*1152}")
    a("s_mul_i32 s68, s66, 384")
    a(f"s_add_u32 s{sW}, s{sW}, s68")
    def woload():
        a(f"s_add_u32 s68, s{sW}, {8*1152}")
        for t in range(2):
            for c in range(3):
                a(f"buffer_load_dwordx4 {r4(W0+8*c+4*t)}, v{vW}, s[48:51], s{68 if t else sW} offen offset:{c*128} {pol}")
    if NVB == 8: woload()
    stamp(4)
    kwait(14 if NVB == 8 else NVB, 8)
    a("s_branch L_q")
    a("L_cD:")
    a(f"s_mov_b32 s{sC}, 3")
    a("s_cmp_lt_u32 s3, 7")
    a("s_cbranch_scc1 L_cA")
    a(f"s_mov_b32 s{sC}, 2")
    for t in range(NVB, 8): vload(t)
    a(f"s_mul_i32 s{sW}, s69, {96*1152}")
    a("s_lshl_b32 s68, s3, 7")
    a(f"s_add_u32 s{sW}, s{sW}, s68")
    a(f"s_sub_u32 s{sW}, s{sW}, {7*128}")
    sp(dprio)
    def wdload(t):
        a(f"buffer_load_dwordx4 {r4(W0+4*t if t < 6 else V0+4*(t-6))}, v{vW}, s[48:51], s{sW} offen {pol}")
        if t < 11: a(f"s_add_u32 s{sW}, s{sW}, {8*1152}")
    for t in range(6): wdload(t)
    sp(1)
    stamp(4)
    kwait(14, 8)
    a("s_branch L_q")
    a("L_cA:")
    for t in range(NVB, 8): vload(t)
    a("L_kw:")
    stamp(4)
    kwait(8, 9)
    a("L_q:")
    a("v_bfe_u32 v19, v0, 3, 1")
    a("v_lshlrev_b32 v17, 8, v19")
    a("v_lshl_add_u32 v17, v10, 6, v17")
    a("v_lshl_add_u32 v17, v12, 4, v17")
    a("v_mov_b32 v16, 0")
    a("v_mov_b32 v9, 0xffff0000")
    a(f"s_mov_b32 s70, {spin * 4}")
    a("L_qs:")
    a(f"ds_read_b32 v15, v16 offset:{FLG}")
    a(f"ds_read_b128 {r4(QB)}, v17 offset:{QL}")
    a("s_waitcnt lgkmcnt(0)")
    a("v_cmp_ne_u32 vcc, 4, v15")
    a("s_cbranch_vccnz L_qr")
    a("L_qd:")
    def blk():
        a("L_qr:")
        a("s_sub_u32 s70, s70, 1")
        a("s_cbranch_scc1 L_qd")
        a(f"s_sleep {qslp}")
        a("s_branch L_qs")
    cold.append(blk)
    stamp(5)
    Dt = lambda t: 124 if t == 0 else K0 + 4 * (t - 1)
    for t in range(8):
        a(f"v_mfma_f32_16x16x32_bf16 {r4(Dt(t))}, {r4(K0+4*t)}, {r4(QB)}, 0")
    a("s_lshl_b32 s68, s3, 3")
    a("v_lshl_add_u32 v18, v19, 7, s68")
    for t in range(8):
        d = Dt(t)
        a(f"v_add_f32_dpp v{d}, v{d+1}, v{d} quad_perm:[1,1,1,1] {FULL}")
        a(f"v_add_f32_dpp v{d+2}, v{d+3}, v{d+2} quad_perm:[3,3,3,3] {FULL}")
    for t in range(8):
        d = Dt(t)
        a(f"v_add_f32_dpp v{d}, v{d+2}, v{d} quad_perm:[2,2,2,2] {FULL}")
    for t in range(8):
        d = Dt(t)
        a(f"v_cvt_pk_bf16_f32 v{d}, v{d}, v{d}")
    for t in range(8):
        d = Dt(t)
        a(f"v_and_b32_dpp v{SC+t}, v{d}, v9 quad_perm:[0,0,0,0] {FULL}")
    for t in range(8): a(f"v_mul_f32 v{SC+t}, {SCALE:#x}, v{SC+t}")
    for t in range(8): a(f"v_cvt_pk_bf16_f32 v{SC+t}, v{SC+t}, v{SC+t}")
    for t in range(8): a(f"v_and_b32 v{SC+t}, v9, v{SC+t}")
    a(f"v_mov_b32 v{S9}, 0xff800000")
    a(f"s_cmp_eq_u32 s{sN}, 8")
    a("s_cbranch_scc1 L_n8")
    a(f"s_cmp_eq_u32 s{sN}, 9")
    a("s_cbranch_scc1 L_n9")
    a(f"v_mov_b32 v{SC}, 0xff800000")
    a("s_branch L_n8")
    a("L_n9:")
    d = K0 + 28
    a(f"v_mfma_f32_16x16x32_bf16 {r4(d)}, {r4(K9)}, {r4(QB)}, 0")
    a(f"v_add_f32_dpp v{d}, v{d+1}, v{d} quad_perm:[1,1,1,1] {FULL}")
    a(f"v_add_f32_dpp v{d+2}, v{d+3}, v{d+2} quad_perm:[3,3,3,3] {FULL}")
    a(f"v_add_f32_dpp v{d}, v{d+2}, v{d} quad_perm:[2,2,2,2] {FULL}")
    a(f"v_cvt_pk_bf16_f32 v{d}, v{d}, v{d}")
    a(f"v_and_b32_dpp v{S9}, v{d}, v9 quad_perm:[0,0,0,0] {FULL}")
    a(f"v_mul_f32 v{S9}, {SCALE:#x}, v{S9}")
    a(f"v_cvt_pk_bf16_f32 v{S9}, v{S9}, v{S9}")
    a(f"v_and_b32 v{S9}, v9, v{S9}")
    a("L_n8:")
    Mx, Ls, T1 = 124, 125, 126
    SS = [SC + t for t in range(8)] + [S9]
    a(f"v_max3_f32 v{Mx}, v{SC}, v{SC+1}, v{SC+2}")
    a(f"v_max3_f32 v{T1}, v{SC+3}, v{SC+4}, v{SC+5}")
    a(f"v_max3_f32 v{Mx}, v{Mx}, v{SC+6}, v{SC+7}")
    a(f"v_max3_f32 v{Mx}, v{Mx}, v{T1}, v{S9}")
    allred("v_max_f32", Mx, T1, inrow=False)
    a(f"s_mov_b32 s72, {LOG2E:#x}")
    a(f"v_mul_f32 v{Mx}, s72, v{Mx}")
    for x in SS: a(f"v_fma_f32 v{x}, v{x}, s72, -v{Mx}")
    for x in SS: a(f"v_exp_f32 v{x}, v{x}")
    a(f"v_add_f32 v{Ls}, v{SC}, v{SC+1}")
    for x in SS[2:]: a(f"v_add_f32 v{Ls}, v{Ls}, v{x}")
    allred("v_add_f32", Ls, T1, inrow=False)
    a("s_mov_b64 exec, 0x101")
    a(f"ds_write_b64 v18, v[{Mx}:{Ls}] offset:{MLW}")
    a("s_mov_b64 exec, -1")
    if NVB < 8:
        a(f"s_cmp_lg_u32 s{sC}, 1")
        a("s_cbranch_scc1 L_nr")
        if race:
            a(f"v_lshlrev_b32 v{QB+1}, 2, v0")
            a(f"buffer_load_dword v{QB}, v{QB+1}, s[36:39], 0 offen offset:{VT} sc1")
        for t in range(NVB, 8): vload(t)
        woload()
        a("L_nr:")
    for x in SS: a(f"v_cvt_pk_bf16_f32 v{x}, v{x}, v{x}")
    for t in range(8): mk_a(K0 + 4 * t, SC + t)
    stamp(6)
    OR, OA, ML4, OQ = 120, 124, QB, SC
    a(f"v_mov_b32 v{OR+3}, s{sT}")
    a("v_lshrrev_b32 v17, 1, v10")
    a("v_lshlrev_b32 v9, 7, v17")
    a("s_lshl_b32 s68, s3, 3")
    a("v_add_u32 v11, s68, v9")
    a("v_lshl_add_u32 v9, v13, 4, v9")
    a("v_lshlrev_b32 v17, 9, v17")
    a("v_and_b32 v19, 15, v0")
    a("v_lshl_add_u32 v17, v19, 5, v17")
    a("v_and_b32 v19, 1, v10")
    a("v_lshl_add_u32 v17, v19, 4, v17")
    a(f"s_mul_i32 s67, s3, {OLS}")
    a("v_add_u32 v17, s67, v17")
    a(f"v_mul_u32_u24 v18, {2*OLS}, v13")
    a("v_lshl_add_u32 v18, v14, 2, v18")
    a(f"s_lshl_b32 s67, s{sUn}, 6")
    a(f"s_add_u32 s67, s67, {OL}")
    a("v_add_u32 v18, s67, v18")
    a(f"v_add_u32 v19, {OLS}, v18")
    a("v_lshlrev_b32 v16, 4, v14")
    a(f"s_lshl4_add_u32 s71, s{sH}, s{sUn}")
    if oh:
        assert not loc
        a("s_and_b32 s67, s71, 0xfc")
        a("s_add_u32 s71, s71, s67")
    a("s_lshl_b32 s71, s71, 11")
    a(f"s_add_u32 s71, s71, {OP}")
    a(f"s_lshl_b32 s67, s{sJ}, 7")
    a("s_add_u32 s57, s67, s71")
    if oh:
        if not race:
            a("s_bfe_u32 s67, s2, 0x10002")
            if oh == 2: a("s_xor_b32 s67, s67, 1")
            a("s_lshl_b32 s67, s67, 13")
            a("s_add_u32 s71, s71, s67")
        a(f"v_lshl_add_u32 v{vE}, v13, 13, v16")
    if loc:
        a(f"s_getreg_b32 s{sU}, hwreg(HW_REG_XCC_ID, 0, 4)")
        a(f"s_and_b32 s68, s{sH}, 7")
        a(f"s_add_u32 s15, s57, {BOFF}")
        a(f"s_xor_b32 s{sU}, s{sU}, s68")
        a(f"s_cselect_b32 s68, {BOFF}, 0")
        a("s_add_u32 s71, s71, s68")
    a(f"s_and_b32 s56, s{sUn}, 8")
    a("s_lshl_b32 s56, s56, 2")
    def oload(i):
        if on("Po"): a(f"buffer_load_dwordx4 {r4(OQ+4*i)}, v15, s[36:39], s71 offen offset:{128*i} sc1")
    def ostore(late):
        ins = lambda so: f"buffer_store_dwordx4 {r4(OR)}, v{vE if oh else 16}, s[36:39], s{so} offen"
        if not on("So"): return
        if not loc:
            a(ins(57) + " sc1"); return
        l1, l2 = a.label("LS"), a.label("LS")
        a(f"s_cmp_lg_u32 s{sU}, 0")
        a(f"s_cbranch_scc1 {l1}")
        a(ins(57))
        a(f"{l2}:")
        if not late: a(ins(15) + " sc1")
        def blk():
            a(f"{l1}:")
            a(ins(57) + " sc1")
            if late: a(ins(15) + " sc1")
            a(f"s_branch {l2}")
        cold.append(blk)
    def pv(wait0, after=None, mid=None, late=False, nine=False):
        wait = lambda t: wait0(t) - (ve if t <= 0 else 0)
        lm, lm2, lr = a.label("ML"), a.label("ML"), a.label("ML")
        if nine:
            mk_a(K9, S9)
            a(f"s_waitcnt vmcnt({wait(-1)})")
            a(f"v_mfma_f32_16x16x32_bf16 {r4(OA)}, {r4(K9)}, {r4(V9)}, 0")
        for t in range(8):
            if t == 7:
                a(f"s_mov_b32 s70, {spin * 4}")
                a(f"{lm}:")
                a(f"ds_read_b128 {r4(ML4)}, v9 offset:{MLW}")
                a(f"ds_read_b32 v{OR}, v11 offset:{MLW}")
                a("s_waitcnt lgkmcnt(0)")
                a(f"v_min_u32 v{OR+1}, v{ML4+1}, v{ML4+3}")
                a(f"v_cmp_eq_u32 vcc, 0, v{OR+1}")
                a(f"s_cbranch_vccnz {lr}")
                a(f"{lm2}:")
                def blk():
                    a(f"{lr}:")
                    a("s_sub_u32 s70, s70, 1")
                    a(f"s_cbranch_scc1 {lm2}")
                    a("s_sleep 2")
                    a(f"s_branch {lm}")
                cold.append(blk)
                G = OR + 1
                a(f"v_max_f32 v{G}, v{ML4}, v{ML4+2}")
                red8("v_max_f32", [G])
                a(f"v_sub_f32 v{OR}, v{OR}, v{G}")
                for e in (0, 2): a(f"v_sub_f32 v{ML4+e}, v{ML4+e}, v{G}")
                for e in (0, 2): a(f"v_exp_f32 v{ML4+e}, v{ML4+e}")
                a(f"v_exp_f32 v{OR}, v{OR}")
                a(f"v_mul_f32 v{ML4+1}, v{ML4}, v{ML4+1}")
                a(f"v_fmac_f32 v{ML4+1}, v{ML4+2}, v{ML4+3}")
                red8("v_add_f32", [ML4 + 1])
                a(f"v_rcp_f32 v{ML4}, v{ML4+1}")
                a(f"v_log_f32 v{ML4+1}, v{ML4+1}")
                a(f"v_mul_f32 v{OR}, v{OR}, v{ML4}")
                a(f"v_add_f32 v{G}, v{G}, v{ML4+1}")
                a(f"v_readlane_b32 s72, v{G}, s56")
                a(f"v_mov_b32 v{OR+2}, s72")
            a(f"s_waitcnt vmcnt({wait(t)})")
            a(f"v_mfma_f32_16x16x32_bf16 {r4(OA)}, {r4(K0+4*t)}, {r4(V0+4*t)}, {r4(OA) if t or nine else 0}")
            if after: after(t)
        stamp(7)
        for r in range(4): a(f"v_mul_f32 v{OA+r}, v{OA+r}, v{OR}")
        a(f"ds_write_b128 v17, {r4(OA)} offset:{OL}")
        if mid: mid()
        a("s_waitcnt lgkmcnt(0)")
        a("s_barrier")
        a(f"ds_read2_b32 {r2(OR)}, v18 offset0:0 offset1:8")
        a(f"ds_read2_b32 {r2(ML4)}, v19 offset0:0 offset1:8")
        a("s_waitcnt lgkmcnt(0)")
        a(f"v_add_f32 v{OR}, v{OR}, v{ML4}")
        a(f"v_add_f32 v{OR+1}, v{OR+1}, v{ML4+1}")
        red8("v_add_f32", [OR, OR + 1])
        a(f"s_mov_b32 exec_lo, {0x03030303 if oh else 0x01010101:#x}")
        a(f"s_mov_b32 exec_hi, {0x03030303 if oh else 0x01010101:#x}")
        ostore(late)
        stamp(8)
    a(f"s_cmp_eq_u32 s{sC}, 1")
    a("s_cbranch_scc1 L_P")
    a(f"s_cmp_eq_u32 s{sC}, 2")
    a("s_cbranch_scc1 L_D")
    a(f"s_cmp_eq_u32 s{sC}, 3")
    a("s_cbranch_scc1 L_H")
    pv(lambda t: 7 - t, nine=True)
    a("s_branch L_exit" if stamps or dg is not None else "s_endpgm")
    a("L_H:")
    a(f"v_lshrrev_b32 v{QA}, 3, v0")
    a(f"v_mul_u32_u24 v{QA}, 18432, v{QA}")
    a(f"v_lshl_add_u32 v{QA}, v13, 4, v{QA}")
    a("s_mul_i32 s68, s69, 3")
    a("s_add_u32 s68, s68, s3")
    a("s_lshl_b32 s68, s68, 7")
    a(f"s_add_u32 s{sW}, s68, {GU - 4*128}")
    def hld():
        if on("Pq"): a(f"buffer_load_dwordx4 {r4(QR)}, v{QA}, s[36:39], s{sW} offen sc1")
    hld()
    if qb: tagbits(QR + 8)
    def hmid():
        a("s_lshl_b32 s68, s3, 7")
        a(f"v_lshl_add_u32 v{QA+1}, v13, 4, s68")
        a("s_waitcnt vmcnt(0)")
        fpoll(hld, "S1,Pq")
        for e in range(4): rnd(QR + e)
        for e in range(4): a(f"v_mov_b32_dpp v{QR+4+e}, v{QR+e} row_ror:8 {FULL}")
        for e in range(4): silu(QR + e, QR + 8 + e)
        for e in range(4): rnd(QR + e)
        for e in range(4): a(f"v_mul_f32 v{QR+e}, v{QR+e}, v{QR+4+e}")
        for e in range(4): a(f"v_cvt_pk_bf16_f32 v{QR+e}, v{QR+e}, v{QR+e}")
        a("s_mov_b64 exec, 0xff")
        a(f"ds_write_b128 v{QA+1}, {r4(QR)} offset:{HL - 4*128}")
        a("s_mov_b64 exec, -1")
    pv(lambda t: 7 - t + (1 if on("Pq") else 0), None, hmid, nine=True)
    a("s_branch L_exit" if stamps or dg is not None else "s_endpgm")
    a("L_D:")
    pv(lambda t: 13 if t < 7 else 12, lambda t: wdload(6 + t) if t < 6 else None)
    a("s_mov_b64 exec, -1")
    HX, AT, DA, O4 = K0, K0 + 12, K0 + 20, K0 + 24
    a("v_lshlrev_b32 v15, 2, v14")
    a(f"v_add_u32 v15, {HL}, v15")
    for t in range(0, 12, 2):
        a(f"ds_read2_b32 {r2(HX+t)}, v15 offset0:{8*t} offset1:{8*t+8}")
    if dh:
        a(f"v_and_b32 v{vE}, 1, v13")
        a(f"v_lshlrev_b32 v{vE}, 6, v{vE}")
        a("v_lshrrev_b32 v16, 1, v13")
        a(f"v_lshl_add_u32 v{vE}, v16, 13, v{vE}")
    else:
        a(f"v_lshlrev_b32 v{vE}, 6, v13")
    a("v_and_b32 v16, 1, v10")
    a(f"v_lshl_add_u32 v{vE}, v16, 5, v{vE}")
    a("v_lshrrev_b32 v16, 1, v10")
    a(f"v_lshl_add_u32 v{vE}, v16, 4, v{vE}")
    if dh:
        a("s_lshl_b32 s67, s3, 8")
        a("s_add_u32 s67, s67, s69")
        a("s_lshl_b32 s67, s67, 7")
        a(f"s_add_u32 s67, s67, {DP - 7*32768}")
    else:
        a("s_mul_i32 s67, s69, 9")
        a("s_add_u32 s67, s67, s3")
        a("s_lshl_b32 s67, s67, 9")
        a(f"s_add_u32 s67, s67, {DP - 7*512}")
    a(f"v_mov_b32 v{O4+1}, s{sT}")
    a(f"v_mov_b32 v{O4+3}, s{sT}")
    a("s_waitcnt lgkmcnt(0)")
    for t in range(12):
        mk_a(AT + 4 * (t & 1), HX + t)
        a(f"s_waitcnt vmcnt({11 - t + ((2 if loc else 1) if on('So') else 0)})")
        a(f"v_mfma_f32_16x16x32_bf16 {r4(DA)}, {r4(AT+4*(t&1))}, {r4(W0+4*t if t < 6 else V0+4*(t-6))}, {r4(DA) if t else 0}")
    a(f"v_permlane32_swap_b32 v{DA}, v{DA+2}")
    a(f"v_permlane32_swap_b32 v{DA+1}, v{DA+3}")
    a(f"v_add_f32_dpp v{O4}, v{DA+2}, v{DA} row_ror:8 {FULL}")
    a(f"v_add_f32_dpp v{O4+2}, v{DA+3}, v{DA+1} row_ror:8 {FULL}")
    a("s_mov_b32 exec_lo, 0x00ff00ff")
    a("s_mov_b32 exec_hi, 0x00ff00ff")
    if on("Sd"): a(f"buffer_store_dwordx4 {r4(O4)}, v{vE}, s[36:39], s67 offen sc1")
    stamp(11)
    a("s_branch L_exit" if stamps or dg is not None else "s_endpgm")
    a("L_P:")
    a("v_lshl_add_u32 v15, v13, 8, v16")
    a(f"s_lshr_b32 s40, s{sJ}, 1" if False else f"s_lshr_b32 s68, s{sJ}, 1")
    a("s_lshl_b32 s68, 0x01010101, s68")
    a(f"s_bitcmp1_b32 s{sJ}, 0")
    a("s_cselect_b32 s64, s68, 0")
    a("s_cselect_b32 s63, 0, s68")
    def first():
        for i in range(2):
            a(f"s_not_b32 exec_lo, s{63+i}")
            a(f"s_not_b32 exec_hi, s{63+i}")
            oload(i)
        a("s_mov_b64 exec, -1")
    if pre: first()
    SW, SR, FA = 1, 2, 3
    a("s_sub_u32 s67, s3, 12")
    a(f"v_lshrrev_b32 v{SW}, 1, v10")
    a(f"v_lshlrev_b32 v{SW}, 10, v{SW}")
    a(f"v_lshl_add_u32 v{SW}, v13, 5, v{SW}")
    a(f"v_and_b32 v{SR}, 1, v10")
    a(f"v_lshl_add_u32 v{SW}, v{SR}, 4, v{SW}")
    a("s_lshl_b32 s68, s67, 11")
    a("s_lshr_b32 s72, s67, 1")
    a("s_lshl_b32 s72, s72, 7")
    a("s_add_u32 s68, s68, s72")
    a(f"v_add_u32 v{SW}, s68, v{SW}")
    a(f"v_lshrrev_b32 v{FA}, 1, v0")
    a(f"v_min_u32 v{FA}, 23, v{FA}")
    a(f"v_and_b32 v{SR}, 1, v0")
    a(f"v_mul_u32_u24 v{SR}, {4096+128}, v{SR}")
    a(f"v_lshl_add_u32 v{SR}, v{FA}, 3, v{SR}")
    a("s_mul_i32 s68, s67, 192")
    a(f"s_add_u32 s68, s68, {SL}")
    a(f"v_add_u32 v{SR}, s68, v{SR}")
    if fh:
        a(f"v_lshrrev_b32 v12, 3, v{FA}")
        a(f"v_and_b32 v{FA}, 7, v{FA}")
        a(f"v_lshlrev_b32 v{FA}, 4, v{FA}")
        a(f"v_lshl_add_u32 v{FA}, v12, {14 if race else 13}, v{FA}")
        if race:
            a("v_and_b32 v12, 1, v0")
            a(f"v_lshl_add_u32 v{FA}, v12, 13, v{FA}")
        a("v_and_b32 v12, 3, v0")
        a("s_lshl2_add_u32 s68, s66, s67")
        a(f"s_mul_i32 s68, s68, {6 if race else 3}")
        a("s_lshl2_add_u32 s68, s68, s65")
        a(f"s_lshl4_add_u32 s68, s68, s{sH}")
        a("s_lshl_b32 s68, s68, 7")
    else:
        a(f"v_lshlrev_b32 v{FA}, 4, v{FA}")
        a("s_lshl2_add_u32 s68, s66, s65")
        a(f"s_lshl4_add_u32 s68, s68, s{sH}")
        a("s_lshl2_add_u32 s68, s68, s67")
        a("s_mul_i32 s68, s68, 384")
    a(f"s_add_u32 s{sW}, s68, {FP}")
    npre = 2 if pre and on("Po") else 0
    def votes(t):
        if t != NVB - 1 or not race: return
        a(f"v_xor_b32 v{QB}, s{sT}, v{QB}")
        a(f"v_cmp_eq_u32 vcc, 1, v{QB}")
        a(f"v_cmp_eq_u32 s[66:67], 0, v{QB}")
        a("s_getreg_b32 s72, hwreg(HW_REG_XCC_ID, 2, 1)")
        a("s_bcnt1_i32_b64 s68, vcc")
        a("s_bcnt1_i32_b64 s69, s[66:67]")
        if stamps:
            a("s_lshl_b32 s19, s68, 8")
            a("s_add_u32 s19, s19, s69")
            a("s_lshl_b32 s19, s19, 16")
        a("s_cmp_gt_u32 s68, s69")
        a(f"s_cselect_b32 s{sR}, {0 if rneg else 1}, {1 if rneg else 0}")
        a(f"s_xor_b32 s{sR}, s{sR}, s72")
        a(f"s_lshl_b32 s{sR}, s{sR}, 13")
        a(f"s_add_u32 s71, s71, s{sR}")
    pv(lambda t: 7 - t + 6 + npre, votes, late=True)
    if not pre: first()
    for i in range(2):
        a(f"s_mov_b32 exec_lo, s{63+i}")
        a(f"s_mov_b32 exec_hi, s{63+i}")
        for r in range(4): a(f"v_mov_b32 v{OQ+4*i+r}, v{OR+r}")
    a("s_mov_b64 exec, -1")
    a(f"s_waitcnt vmcnt({1 if pre and on('So') else 0})")
    FS = K0 + 28
    a(f"v_mov_b32 v{FS+1}, s{sT}")
    a(f"v_mov_b32 v{FS+3}, s{sT}")
    def odense(done):
        slow, fin = a.label("DS"), a.label("DF")
        TM, AD = V0 + 12, V0 + 15
        a("s_and_b64 s[64:65], vcc, s[68:69]")
        a(f"s_cbranch_scc1 {slow}")
        a("s_bcnt1_i32_b64 s72, s[66:67]")
        a(f"s_cmp_gt_u32 s72, {oth}")
        a(f"s_cbranch_scc1 {slow}")
        a("s_mov_b64 s[64:65], vcc")
        a(f"v_add_u32 v{AD}, 128, v15")
        a(f"v_cndmask_b32 v{AD}, v{AD}, v15, vcc")
        def iss(b):
            if not oa:
                a(f"buffer_load_dwordx4 {r4(b)}, v{AD}, s[36:39], s71 offen sc1"); return
            for e in (0, 2): a(f"v_mov_b64 {r2(b+e)}, 0")
            for e in (2, 0): a(f"buffer_atomic_or_x2 {r2(b+e)}, v{AD}, s[36:39], s71 offen offset:{4*e} sc1")
        dense(iss, 2 if oa else 1,
              [V0 + 16 + 4 * k for k in range(oa or NS)],
              lambda b: a(f"v_cmp_eq_u32 vcc, s{sT}, v{b+3}"),
              lambda b: [a(f"v_mov_b32 v{TM+r}, v{b+r}") for r in range(3)], fin)
        a(f"{fin}:")
        a("s_mov_b64 exec, s[64:65]")
        for r in range(3): a(f"v_mov_b32 v{OQ+r}, v{TM+r}")
        a("s_mov_b64 exec, s[68:69]")
        for r in range(3): a(f"v_mov_b32 v{OQ+4+r}, v{TM+r}")
        a("s_mov_b64 exec, -1")
        a(f"s_branch {done}")
        a(f"{slow}:")
    poll2(oload, OQ + 3, OQ + 7, slp, "So,Po", odense if oth else None)
    stamp(9)
    if cl == 1:
        for r in range(0, 8, 2): a(f"v_mov_b64 {r2(V0+16+r)}, {r2(OQ+r)}")
    G = K0
    a(f"v_max_f32 v{G}, v{OQ+2}, v{OQ+6}")
    red8("v_max_f32", [G])
    for e in (2, 6): a(f"v_sub_f32 v{OQ+e}, v{OQ+e}, v{G}")
    for e in (2, 6): a(f"v_exp_f32 v{OQ+e}, v{OQ+e}")
    a(f"v_mul_f32 v{OQ}, v{OQ}, v{OQ+2}")
    a(f"v_mul_f32 v{OQ+1}, v{OQ+1}, v{OQ+2}")
    a(f"v_add_f32 v{OQ+2}, v{OQ+2}, v{OQ+6}")
    a(f"v_fmac_f32 v{OQ}, v{OQ+4}, v{OQ+6}")
    a(f"v_fmac_f32 v{OQ+1}, v{OQ+5}, v{OQ+6}")
    red8("v_add_f32", [OQ + 2, OQ, OQ + 1])
    a(f"v_rcp_f32 v{OQ+2}, v{OQ+2}")
    a(f"v_mul_f32 v{OQ}, v{OQ}, v{OQ+2}")
    a(f"v_mul_f32 v{OQ+1}, v{OQ+1}, v{OQ+2}")
    a(f"v_cvt_pk_bf16_f32 v{OQ}, v{OQ}, v{OQ}")
    a(f"v_cvt_pk_bf16_f32 v{OQ+1}, v{OQ+1}, v{OQ+1}")
    A0, SD = K0 + 16, V0
    mk_a(A0, OQ)
    for c in range(3):
        a(f"v_mfma_f32_16x16x32_bf16 {r4(SD+4*c)}, {r4(A0)}, {r4(W0+8*c)}, 0")
        if c == 0: mk_a(A0 + 4, OQ + 1)
    for c in range(3):
        a(f"v_mfma_f32_16x16x32_bf16 {r4(SD+4*c)}, {r4(A0+4)}, {r4(W0+8*c+4)}, {r4(SD+4*c)}")
    a("s_mov_b32 exec_lo, 0x00ff00ff")
    a("s_mov_b32 exec_hi, 0xff00ff00")
    for c in range(3):
        a(f"ds_write_b128 v{SW}, {r4(SD+4*c)} offset:{SL + 256*c}")
    a("s_mov_b64 exec, -1")
    a("s_waitcnt lgkmcnt(0)")
    a("s_barrier")
    for i in range(2):
        a(f"ds_read2st64_b64 {r4(K0+4*i)}, v{SR} offset0:{4*i} offset1:{4*i+2}")
    a("s_waitcnt lgkmcnt(1)")
    a(f"v_add_f32 v{K0}, v{K0}, v{K0+2}")
    a(f"v_add_f32 v{K0+1}, v{K0+1}, v{K0+3}")
    a("s_waitcnt lgkmcnt(0)")
    a(f"v_add_f32 v{K0+4}, v{K0+4}, v{K0+6}")
    a(f"v_add_f32 v{K0+5}, v{K0+5}, v{K0+7}")
    a(f"v_add_f32 v{K0}, v{K0}, v{K0+4}")
    a(f"v_add_f32 v{K0+1}, v{K0+1}, v{K0+5}")
    a(f"v_add_f32_dpp v{FS}, v{K0}, v{K0} quad_perm:[1,0,3,2] {FULL}")
    a(f"v_add_f32_dpp v{FS+2}, v{K0+1}, v{K0+1} quad_perm:[1,0,3,2] {FULL}")
    if race:
        a("s_mov_b32 exec_hi, 0x0000ffff")
    else:
        a("s_mov_b32 exec_lo, 0x55555555")
        a("s_mov_b32 exec_hi, 0x00005555")
    if on("Ss"): a(f"buffer_store_dwordx4 {r4(FS)}, v{FA}, s[36:39], s{sW} offen sc1")
    stamp(10)
    if loc and on("So"):
        a("s_mov_b32 exec_lo, 0x01010101")
        a("s_mov_b32 exec_hi, 0x01010101")
        a(f"buffer_store_dwordx4 {r4(OR)}, v16, s[36:39], s15 offen sc1")
    if cl == 1:
        a(f"s_mul_i32 s68, s65, 3")
        a(f"s_add_u32 s68, s68, 2")
        a(f"s_cmp_lg_u32 s68, s{sJ}")
        a("s_cbranch_scc1 L_nc")
        a("s_mov_b64 exec, -1")
        for i in range(2):
            a(f"buffer_store_dwordx4 {r4(V0+16+4*i)}, v15, s[36:39], s71 offen offset:{128*i} sc1")
        a("L_nc:")
    if cl >= 2:
        a("s_cmp_lg_u32 s3, 13")
        a("s_cbranch_scc1 L_nc")
        if cl == 2:
            a(f"s_cmp_lg_u32 s{sJ}, 11")
            a("s_cbranch_scc1 L_nc")
        a("buffer_wbl2 sc1 ")
        a("L_nc:")
    a("s_cmp_lg_u32 s3, 12")
    a("s_cbranch_scc1 L_exit")
    a("s_cmp_ge_u32 s2, 72")
    a("s_cbranch_scc1 L_exit")
    a("s_mov_b64 exec, -1")
    F0, DR = V0, V0 + 16
    sF = 2
    if race:
        a("s_lshr_b32 s68, s2, 1")
        a("s_lshl_b32 s68, s68, 14")
        a("s_and_b32 s67, s2, 1")
        a("s_lshl_b32 s67, s67, 6")
        a("s_add_u32 s68, s68, s67")
        a(f"s_add_u32 s68, s68, s{sR}")
    elif fh or dh:
        sF = 72
        a("s_lshr_b32 s67, s2, 1")
        a("s_xor_b32 s67, s67, s2")
        a("s_and_b32 s67, s67, 2")
        a("s_mul_i32 s67, s67, 3")
        a("s_xor_b32 s72, s67, s2")
        if fh == 2: a("s_xor_b32 s72, s72, 2")
        a("s_lshr_b32 s68, s72, 1")
        a("s_lshl_b32 s68, s68, 13")
        a("s_and_b32 s67, s72, 1")
        a("s_lshl_b32 s67, s67, 6")
        a("s_add_u32 s68, s68, s67")
    a("v_lshrrev_b32 v9, 2, v0")
    a(f"v_mul_u32_u24 v15, {128 if fh else 1536}, v9")
    a("v_lshl_add_u32 v15, v12, 4, v15")
    a(f"v_mul_u32_u24 v9, {128 if dh else 4608}, v9")
    a("v_lshl_add_u32 v9, v12, 4, v9")
    a(f"s_lshl_b32 s56, s{sF}, 6")
    if fh:
        a(f"s_add_u32 s57, s68, {FP}")
    else:
        a(f"s_mul_i32 s67, s{sF}, 43")
        a("s_lshr_b32 s67, s67, 10")
        a(f"s_mul_i32 s67, s67, {64*1536 - 24*64}")
        a("s_add_u32 s67, s67, s56")
        a(f"s_add_u32 s57, s67, {FP}")
    a(f"s_add_u32 s56, s{68 if dh else 56}, {DP}")
    for i in range(1, 4): a(f"s_add_u32 s{60+i}, s57, {i*16*(128 if fh else 1536)}")
    def fissue(b=None):
        if b is None: b = F0
        if on("Pf"):
            for i in range(4):
                a(f"buffer_load_dwordx4 {r4(b+4*i)}, v15, s[36:39], s{60+i if i else 57} offen sc1")
    def dissue():
        if on("Pd"):
            for i in range(3):
                if i: a(f"s_add_u32 s67, s56, {i*16*(128 if dh else 4608)}")
                a(f"buffer_load_dwordx4 {r4(DR+4*i)}, v9, s[36:39], s{67 if i else 56} offen sc1")
    dissue()
    a("v_lshlrev_b32 v17, 2, v12")
    a(f"s_lshl_b32 s59, s{sF}, 4")
    a(f"buffer_load_dword v18, v17, s[44:47], s59 offen")
    fissue()
    srd(a, 52, 22, 1152)
    a(f"s_waitcnt vmcnt({4 if on('Pf') else 0})")
    def colred(x):
        for m in ("row_ror:4", "row_ror:8"):
            for e in (0, 2): a(f"v_add_f32_dpp v{x+e}, v{x+e}, v{x+e} {m} {FULL}")
        for sw in ("v_permlane16_swap_b32", "v_permlane32_swap_b32"):
            for e in (0, 2): a(f"v_mov_b32 v{x+e+1}, v{x+e}")
            for e in (0, 2): a(f"{sw} v{x+e+1}, v{x+e}")
            for e in (0, 2): a(f"v_add_f32 v{x+e}, v{x+e}, v{x+e+1}")
    pollm(dissue, [DR + 4 * i + 3 for i in range(3)], [K0, K0 + 1], fslp, "Sd,Pd")
    for e in (0, 2):
        a(f"v_add_f32 v{DR+e}, v{DR+e}, v{DR+4+e}")
    for e in (0, 2):
        a(f"v_add_f32 v{DR+e}, v{DR+e}, v{DR+8+e}")
    colred(DR)
    for e in (0, 2): rnd(DR + e)
    for e in (0, 2): silu(DR + e, DR + e + 1)
    for e in (0, 2): rnd(DR + e)
    a("v_and_b32 v19, 0xffff0000, v18")
    a("v_lshlrev_b32 v18, 16, v18")
    a("s_waitcnt vmcnt(0)")
    def fdense(done):
        slow, fin = a.label("DS"), a.label("DF")
        a("s_bcnt1_i32_b64 s72, vcc")
        a(f"s_cmp_gt_u32 s72, {fth}")
        a(f"s_cbranch_scc1 {slow}")
        a("s_mov_b64 s[66:67], vcc")
        def chk(b):
            a(f"v_bitop3_b32 v{K0}, v{b+3}, v{b+7}, s{sT} bitop3:0x7e")
            a(f"v_bitop3_b32 v{K0+1}, v{b+11}, v{b+15}, s{sT} bitop3:0x7e")
            a(f"v_or_b32 v{K0}, v{K0}, v{K0+1}")
            a(f"v_cmp_eq_u32 vcc, 0, v{K0}")
        dense(fissue, 4, [K0 + 4, W0, SC, 0][:NS], chk,
              lambda b: [a(f"v_mov_b32 v{F0+2*r}, v{b+2*r}") for r in range(8)], fin)
        a(f"{fin}:")
        a("s_mov_b64 exec, -1")
        a(f"s_branch {done}")
        a(f"{slow}:")
    def fatom(done):
        assert fh
        slow, fin = a.label("DS"), a.label("DF")
        AD = K0 + 2
        M = [4, 6, 8, 10]
        a("s_bcnt1_i32_b64 s72, vcc")
        a(f"s_cmp_gt_u32 s72, {fth}")
        a(f"s_cbranch_scc1 {slow}")
        for i in range(4): a(f"v_cmp_ne_u32 s[{M[i]}:{M[i]+1}], s{sT}, v{F0+4*i+3}")
        for i in range(4):
            a(f"s_bcnt1_i32_b64 s68, s[{M[i]}:{M[i]+1}]")
            a("s_sub_u32 s72, s72, s68")
        a("s_cmp_lg_u32 s72, 0")
        a(f"s_cbranch_scc1 {slow}")
        a("s_mov_b64 s[66:67], vcc")
        a(f"v_mov_b32 v{AD}, v15")
        a(f"s_or_b64 exec, s[{M[1]}:{M[1]+1}], s[{M[3]}:{M[3]+1}]")
        a(f"v_add_u32 v{AD}, 2048, v{AD}")
        for e in (0, 2, 8, 10): a(f"v_swap_b32 v{F0+e}, v{F0+4+e}")
        a(f"s_or_b64 exec, s[{M[2]}:{M[2]+1}], s[{M[3]}:{M[3]+1}]")
        a(f"v_add_u32 v{AD}, 4096, v{AD}")
        for e in (0, 2, 4, 6): a(f"v_swap_b32 v{F0+e}, v{F0+8+e}")
        def iss(b):
            for e in (0, 2): a(f"v_mov_b64 {r2(b+e)}, 0")
            for e in (0, 2): a(f"buffer_atomic_or_x2 {r2(b+e)}, v{AD}, s[36:39], s57 offen offset:{4*e} sc1")
        def chk(b):
            a(f"v_bitop3_b32 v{K0}, v{b+1}, v{b+3}, s{sT} bitop3:0x7e")
            a(f"v_cmp_eq_u32 vcc, 0, v{K0}")
        dense(iss, 2, [K0 + 4 + 4 * k for k in range(fa)], chk,
              lambda b: [a(f"v_mov_b32 v{F0+e}, v{b+e}") for e in (0, 2)], fin)
        a(f"{fin}:")
        a("s_mov_b64 exec, -1")
        a(f"s_branch {done}")
        a(f"{slow}:")
    pollm(fissue, [F0 + 4 * i + 3 for i in range(4)], [K0, K0 + 1], fslp, "Ss,Pf", fatom if fa else fdense if fth else None)
    stamp(11)
    for e in (0, 2): a(f"v_add_f32 v{F0+e}, v{F0+e}, v{F0+4+e}")
    for e in (0, 2): a(f"v_add_f32 v{F0+8+e}, v{F0+8+e}, v{F0+12+e}")
    for e in (0, 2): a(f"v_add_f32 v{F0+e}, v{F0+e}, v{F0+8+e}")
    colred(F0)
    for e in (0, 2): rnd(F0 + e)
    for e in (0, 2): a(f"v_mul_f32 v{F0+e}, v{F0+e}, v{DR+e}")
    for e in (0, 2): rnd(F0 + e)
    a(f"v_add_f32 v{F0}, v{F0}, v18")
    a(f"v_add_f32 v{F0+2}, v{F0+2}, v19")
    a(f"v_cvt_pk_bf16_f32 v{F0}, v{F0}, v{F0+2}")
    a("s_mov_b64 exec, 15")
    a(f"buffer_store_dword v{F0}, v17, s[52:55], s59 offen")
    if amp:
        a("s_memrealtime s[98:99]")
        a("s_waitcnt lgkmcnt(0)")
        a("s_sub_u32 s100, s98, s74")
        a("s_sub_i32 s98, s100, 1300")
        a("s_max_i32 s98, s98, 0")
        a("s_min_i32 s98, s98, 800")
        a(f"s_mul_i32 s98, s98, {amp}")
        a("s_add_u32 s100, s100, s98")
        a("L_amp:")
        a("s_sleep 1")
        a("s_memrealtime s[98:99]")
        a("s_waitcnt lgkmcnt(0)")
        a("s_sub_u32 s98, s98, s74")
        a("s_cmp_lt_u32 s98, s100")
        a("s_cbranch_scc1 L_amp")
    a("s_cmp_lg_u32 s2, 0")
    a("s_cbranch_scc1 L_exit")
    a("s_mov_b64 exec, 1")
    a(f"v_mov_b32 v{F0+4}, s{sT}")
    if on("St"): a(f"buffer_store_dword v{F0+4}, v17, s[36:39], 0 offen sc1")
    a("L_exit:")
    if dg is not None:
        a("s_getreg_b32 s100, hwreg(HW_REG_XCC_ID, 0, 3)")
        if dw is not None:
            a("s_sub_u32 s100, s100, s2")
            a("s_and_b32 s100, s100, 7")
            a("s_mul_i32 s100, s100, 300")
            a("s_add_u32 s100, s100, 2000")
            a(f"s_cmp_lg_u32 s2, {dw}")
        else:
            a(f"s_cmp_lg_u32 s100, {dg}")
        a("s_cbranch_scc1 L_end")
        a("L_dg:")
        a("s_sleep 2")
        a("s_memrealtime s[98:99]")
        a("s_waitcnt lgkmcnt(0)")
        a(f"s_sub_u32 s98, s98, s{74+2*dgs}")
        a(f"s_cmp_lt_u32 s98, {'s100' if dw is not None else 1500 if dgs else 3000}")
        a("s_cbranch_scc1 L_dg")
    if stamps:
        a("s_waitcnt vmcnt(0)")
        stamp(12)
        a("s_getreg_b32 s100, hwreg(HW_REG_XCC_ID)")
        a(f"s_or_b32 s101, s{sR}, s19" if race else "s_mov_b32 s101, s70")
        a("s_lshl4_add_u32 s67, s2, s3")
        a("s_lshl_b32 s67, s67, 7")
        a(f"s_add_u32 s67, s67, {STAMP}")
        a("s_mov_b64 exec, 1")
        a("v_mov_b32 v17, 0")
        a("s_waitcnt lgkmcnt(0)")
        if dbg:
            a("s_and_b32 s100, s100, 7")
            a("s_lshl_b32 s100, s100, 2")
            a("v_mov_b32 v16, s100")
            a(f"v_mov_b32 v18, s{74+2*dbg}")
            a("v_not_b32 v19, s74")
            a("global_atomic_umax v16, v18, s[24:25]")
            a("global_atomic_umax v16, v19, s[24:25] offset:32")
            a("s_endpgm")
        for i in range(0, 14, 2):
            for k in range(4): a(f"v_mov_b32 v{K0+k+4*(i//2)}, s{74+2*i+k}")
            a(f"buffer_store_dwordx4 {r4(K0+4*(i//2))}, v17, s[36:39], s67 offen offset:{i*8}")
    a("L_end:")
    a("s_endpgm")
    i = 0
    while i < len(cold):
        cold[i](); i += 1
    a.l = [(l[:-3] + (hs if "store" in l else hl)) if l.endswith(" sc1") else l for l in a.l]
    k = 0
    for i, l in enumerate(a.l):
        op = l.split()[0] if l.split() else ""
        if k < pad and op in ("v_lshrrev_b32", "v_and_b32", "v_lshlrev_b32"):
            a.l[i] = l.replace(op, op + "_e64"); k += 1
    s = wrap([f"; @launch grid=(256,1,1) block=(1024,1,1) lds={LDS}"], a.text(), [descriptor(KN, 128, 102)])
    open(out, "w").write(s)
    return a
if __name__ == "__main__":
    import build, json
    from cfg13 import *
    cfgs = eval(sys.argv[1])
    for name, kw in cfgs.items():
        a = gen(out=name + ".s", **kw)
        build.build(name + ".s", name + ".co")
        print("built", name, "lines", len(a.l), "nops", a.nops)
    print(" ".join(n + ".s" for n in cfgs))
    print(json.dumps(["work/" + n + e for n in cfgs for e in (".s", ".co")]))
```
